```python
import torch

def _softmax(x, axis=-1):
    return torch.softmax(x, dim=axis)
def _gelu(x):
    return torch.nn.functional.gelu(x, approximate="tanh")
def _silu(x):
    return torch.nn.functional.silu(x)
def _sigmoid(x):
    return torch.sigmoid(x)
def _layernorm(x, axis=-1, eps=1e-5):
    m = x.mean(dim=axis, keepdim=True)
    v = x.var(dim=axis, keepdim=True, unbiased=False)
    return (x - m) / torch.sqrt(v + eps)
def _scatter_add(tgt, idx, src, axis=0):
    return tgt.clone().index_add_(axis, idx, src)
def _segment_sum(src, seg, n):
    out = torch.zeros((n,) + src.shape[1:], dtype=src.dtype)
    return out.index_add_(0, seg, src)
def _pad(x, pw):
    flat = tuple(v for pair in reversed(pw) for v in pair)
    return torch.nn.functional.pad(x, flat)

kernel_name = 'gated_mix__compressed_kv_cla__moe_arch_mod__prompt'

def setup_inputs():

    _w = (lambda a: (lambda t: t.to(torch.bfloat16) if t.is_floating_point() else t)(torch.as_tensor(a)))
    def _A_setup():
        B, H, Sq, Sk, D, M = 1, 32, 2048, 2048, 128, 576
        Dc = 4 * D
        return {
            "x": _w((lambda *s: torch.randn(*s, dtype=torch.bfloat16) * 0.05)(B, Sq, M)),
            "c_kv": _w((lambda *s: torch.randn(*s, dtype=torch.bfloat16) * 0.8)(B, Sk, Dc)),
            "w_q": _w((lambda *s: torch.randn(*s, dtype=torch.bfloat16) * 6.4)(M, H, D) * (M ** -0.5)),
            "w_uk": _w((lambda *s: torch.randn(*s, dtype=torch.bfloat16) * 6.4)(Dc, H, D) * (Dc ** -0.5)),
            "w_uv": _w((lambda *s: torch.randn(*s, dtype=torch.bfloat16) * 0.8)(Dc, H, D) * (Dc ** -0.5)),
            "w_o": _w((lambda *s: torch.randn(*s, dtype=torch.bfloat16) * 0.8)(H, D, M) * ((H * D) ** -0.5)),
        }
    _A_in = _A_setup()

    def _B_setup():
        B, S, D, F, C = 1, 2048, 576, 4608, 1
        return {
            "x": _w((lambda *s: torch.randn(*s, dtype=torch.bfloat16) * 0.05)(B, S, D)),
            "w_r": _w((lambda *s: torch.randn(*s, dtype=torch.bfloat16) * 3.2)(D)),
            "w_gate": _w((lambda *s: torch.randn(*s, dtype=torch.bfloat16) * 0.2)(D, F)),
            "w_up": _w((lambda *s: torch.randn(*s, dtype=torch.bfloat16) * 0.2)(D, F)),
            "w_down": _w((lambda *s: torch.randn(*s, dtype=torch.bfloat16) * 0.2)(F, D)),
        }
    _B_in = _B_setup()

    return {
        "A_x": _A_in["x"],
        "A_c_kv": _A_in["c_kv"],
        "A_w_q": _A_in["w_q"],
        "A_w_uk": _A_in["w_uk"],
        "A_w_uv": _A_in["w_uv"],
        "A_w_o": _A_in["w_o"],
        "B_x": _B_in["x"],
        "B_w_r": _B_in["w_r"],
        "B_w_gate": _B_in["w_gate"],
        "B_w_up": _B_in["w_up"],
        "B_w_down": _B_in["w_down"],
        "gate_w": _w((lambda *s: torch.randn(*s, dtype=torch.bfloat16) * 0.05)(576) * 16.0),
    }

def reference(A_x, A_c_kv, A_w_q, A_w_uk, A_w_uv, A_w_o, B_x, B_w_r, B_w_gate, B_w_up, B_w_down, gate_w):
    def _A_ref(x, c_kv, w_q, w_uk, w_uv, w_o):
        B, Sq, M = x.shape[0], x.shape[1], x.shape[2]
        Sk = c_kv.shape[1]
        H, D = w_q.shape[1], w_q.shape[2]
        q = torch.einsum("bqm,mhd->bhqd", x, w_q)
        k = torch.einsum("bkc,chd->bhkd", c_kv, w_uk)
        v = torch.einsum("bkc,chd->bhkd", c_kv, w_uv)
        scores = torch.einsum("bhqd,bhkd->bhqk", q, k) * (D ** -0.5)
        off = Sk - Sq
        qi = torch.arange(Sq)[:, None]
        kj = torch.arange(Sk)[None, :]
        cmask = kj <= (qi + off)
        scores = torch.where(cmask[None, None], scores, -1e9)
        p = _softmax(scores, axis=-1)
        ctx = torch.einsum("bhqk,bhkd->bhqd", p, v)
        return torch.einsum("bhqd,hdm->bqm", ctx, w_o)

    def _B_ref(x, w_r, w_gate, w_up, w_down):
        B, S, D = x.shape
        C = 1
        r = x @ w_r
        idx = torch.argsort(-r, axis=-1)[:, :C]
        idx_e = (lambda x, n, axis: torch.repeat_interleave(x, n, dim=axis))(idx.reshape(B, C, 1), D, axis=2)
        x_sel = (lambda x, i, axis: torch.take_along_dim(x, i, dim=axis))(x, idx_e, axis=1)
        g = _silu(x_sel @ w_gate)
        u = x_sel @ w_up
        y = (g * u) @ w_down
        r_sel = _sigmoid((lambda x, i, axis: torch.take_along_dim(x, i, dim=axis))(r, idx, axis=1))
        y = y * r_sel.reshape(B, C, 1)
        b_off = (torch.arange(B) * S).reshape(B, 1)
        flat_idx = (idx + b_off).reshape(B * C)
        zero = (x * 0.0).reshape(B * S, D)
        upd = _scatter_add(zero, flat_idx, y.reshape(B * C, D), axis=0)
        return x + upd.reshape(B, S, D)

    x = A_x
    g = _sigmoid((x * gate_w).sum(-1, keepdims=True))
    a = _A_ref(x, A_c_kv, A_w_q, A_w_uk, A_w_uv, A_w_o)
    b = _B_ref(x, B_w_r, B_w_gate, B_w_up, B_w_down)
    return g * a + (1 - g) * b
```

```python
import re

REG_RE = re.compile(r'\b([vas])(\d+)\b|\b([vas])\[(\d+):(\d+)\]|\b(vcc|exec|m0|scc)\b')

def regs_of(text):
    out = []
    for m in REG_RE.finditer(text):
        if m.group(1):
            out.append((m.group(1), int(m.group(2))))
        elif m.group(3):
            out += [(m.group(3), i) for i in range(int(m.group(4)), int(m.group(5)) + 1)]
        else:
            out.append((m.group(6), 0))
    return out

TRANS = ('v_exp_f32', 'v_log_f32', 'v_rcp_f32', 'v_rsq_f32', 'v_sqrt_f32')

class I:
    __slots__ = ('text', 'op', 'kind', 'rd', 'wr', 'srcc', 'ab', 'wait', 'tag', 'lds_dma', 'store_data')
    def __init__(self, text, tag=None):
        self.text = text
        self.tag = tag
        self.wait = None
        t = text.split(';')[0].strip()
        self.op = t.split()[0] if t else ''
        op = self.op
        self.rd, self.wr, self.srcc, self.ab = [], [], [], []
        self.lds_dma = False
        self.store_data = []
        if not t or t.endswith(':') or op.startswith('.'):
            self.kind = 'label'
            return
        rest = t[len(op):]
        ops = [o.strip() for o in rest.split(',')]
        if op.startswith('v_mfma'):
            self.kind = 'mfma'
            self.wr = regs_of(ops[0]); self.ab = regs_of(ops[1]) + regs_of(ops[2]); self.srcc = regs_of(ops[3])
            self.rd = self.ab + self.srcc
        elif op.startswith('ds_read') or op.startswith('ds_bpermute') or op.startswith('ds_swizzle'):
            self.kind = 'ds'; self.wr = regs_of(ops[0]); self.rd = regs_of(','.join(ops[1:]))
        elif op.startswith('ds_write') or op.startswith('ds_add'):
            self.kind = 'ds'; self.rd = regs_of(rest)
        elif op.startswith('buffer_load'):
            self.kind = 'vmem'
            if re.search(r'\blds\b', rest):
                self.lds_dma = True; self.rd = regs_of(rest) + [('m0', 0)]
            else:
                self.wr = regs_of(ops[0]); self.rd = regs_of(','.join(ops[1:]))
        elif op.startswith('buffer_store') or op.startswith('buffer_atomic'):
            self.kind = 'vmem'; self.rd = regs_of(rest)
            if op.endswith('x4') or op.endswith('x3'):
                self.store_data = regs_of(ops[0])
            if op.startswith('buffer_atomic') and re.search(r'\bsc0\b', rest):
                self.wr = regs_of(ops[0])
        elif op in ('buffer_inv', 'buffer_wbl2'):
            self.kind = 'vmem'
        elif op.startswith('s_load') or op.startswith('s_memtime') or op.startswith('s_memrealtime'):
            self.kind = 'smem'; self.wr = regs_of(ops[0]); self.rd = regs_of(','.join(ops[1:]))
        elif op == 's_waitcnt':
            self.kind = 'wait'
        elif op == 's_nop':
            self.kind = 'nop'
        elif op == 's_barrier':
            self.kind = 'barrier'
        elif op.startswith('s_cbranch') or op in ('s_branch', 's_setpc_b64', 's_endpgm', 's_call_b64', 's_swappc_b64'):
            self.kind = 'branch'
            self.rd = regs_of(rest) + ([('vcc', 0)] if 'vcc' in op else []) + ([('scc', 0)] if 'scc' in op else [])
        elif op.startswith('s_cmp') or op.startswith('s_bitcmp'):
            self.kind = 'salu'; self.rd = regs_of(rest); self.wr = [('scc', 0)]
        elif op in ('s_sleep', 's_setprio'):
            self.kind = 'salu'
        elif op.startswith('s_'):
            self.kind = 'salu'; self.wr = regs_of(ops[0]); self.rd = regs_of(','.join(ops[1:]))
            if 'saveexec' in op: self.wr.append(('exec', 0))
        elif op.startswith('v_'):
            self.kind = 'valu'
            if op.startswith('v_permlane') and 'swap' in op:
                self.wr = regs_of(rest); self.rd = regs_of(rest)
            elif op.startswith('v_cmp'):
                self.wr = regs_of(ops[0]); self.rd = regs_of(','.join(ops[1:]))
            else:
                self.wr = regs_of(ops[0]); self.rd = regs_of(','.join(ops[1:]))
                if op.startswith('v_fmac') or op.startswith('v_dot2c') or '_dpp' in op or ' row_' in rest or 'quad_perm' in rest:
                    self.rd += self.wr
        else:
            raise ValueError('unknown instruction: ' + text)
    def states(self):
        if self.kind == 'label': return 0
        if self.kind == 'nop': return int(self.text.split()[1]) + 1
        return 1
    def is_trans(self): return self.op.replace('_e32', '').replace('_e64', '') in TRANS
    def is_dpp(self): return '_dpp' in self.op or ' row_' in self.text or 'quad_perm' in self.text

class Block:
    def __init__(self, name):
        self.name = name; self.ins = []
    def __call__(self, text, tag=None):
        for ln in text.split('\n'):
            ln = ln.strip()
            if not ln: continue
            if ln.startswith('WAIT'):
                i = self.autowait()
                i.tag = [(x.split(':')[0], int(x.split(':')[1])) for x in ln.split()[1:] if ':' in x]
                if 'lgkm0' in ln.split(): i.wait['lgkm'] = 0
                continue
            t = tag
            if '@' in ln:
                ln, t = ln.split('@'); ln = ln.strip(); t = t.strip()
            self.ins.append(I(ln, t))
    def add(self, i): self.ins.append(i)
    def autowait(self):
        i = I('s_waitcnt auto'); i.wait = {'vm': None, 'lgkm': None}; self.ins.append(i); return i

def emit_gaps(blk, mfmas, gaps, pre=None):
    if pre is not None:
        for t in pre: blk(t)
    order = {'wait': 0, 'salu': 1, 'barrier': 1, 'ds': 2, 'vmem': 2, 'valu': 3, 'nop': 3, 'branch': 4, 'label': 4}
    for i, m in enumerate(mfmas):
        blk(m)
        blk.autowait()
        for t in gaps[i]: blk(t)

def derive_waits(traces):
    for tr in traces:
        seq = [i for b in tr for i in b.ins]
        pend = {'vm': [], 'lgkm': []}
        n = len(seq)
        def cnt_of(i):
            if i.kind == 'vmem' and i.op != 'buffer_inv_x': return 'vm'
            if i.kind in ('ds', 'smem'): return 'lgkm'
            return None
        gen = 0
        for k, i in enumerate(seq):
            if i.kind == 'barrier': gen += 1
            if i.kind == 'wait' and i.wait is not None:
                need = {'vm': None, 'lgkm': None}
                for (tg, age) in (i.tag or []):
                    for idx in range(len(pend['vm']) - 1, -1, -1):
                        p = pend['vm'][idx]
                        if p[2] == tg and p[3] <= gen - age:
                            left = len(pend['vm']) - 1 - idx
                            need['vm'] = left if need['vm'] is None else min(need['vm'], left)
                            break
                for j in range(k + 1, n):
                    x = seq[j]
                    if x.kind == 'wait' and x.wait is not None: break
                    touched = set(x.rd) | set(x.wr)
                    for c in pend:
                        for idx in range(len(pend[c]) - 1, -1, -1):
                            if pend[c][idx][0] & touched:
                                left = len(pend[c]) - 1 - idx
                                if c == 'lgkm' and any(p[1] == 'smem' for p in pend[c]): left = 0
                                need[c] = left if need[c] is None else min(need[c], left)
                                break
                for c in need:
                    if need[c] is not None:
                        lim = 63 if c == 'vm' else 15
                        v = min(need[c], lim)
                        i.wait[c] = v if i.wait[c] is None else min(i.wait[c], v)
                    v = i.wait[c]
                    if v is not None and len(pend[c]) > v:
                        pend[c] = pend[c][len(pend[c]) - v:] if v else []
                continue
            if i.kind == 'wait':
                for c, pat in (('vm', r'vmcnt\((\d+)\)'), ('lgkm', r'lgkmcnt\((\d+)\)')):
                    m = re.search(pat, i.text)
                    if m:
                        v = int(m.group(1))
                        if len(pend[c]) > v: pend[c] = pend[c][len(pend[c]) - v:] if v else []
                continue
            touched = set(i.rd) | set(i.wr)
            for c in pend:
                for p in pend[c]:
                    if p[0] & touched:
                        raise RuntimeError('unwaited %s result used by: %s (regs %s) in trace %s' % (c, i.text, sorted(p[0] & touched)[:4], [b.name for b in tr]))
            c = cnt_of(i)
            if c: pend[c].append((set() if i.tag == 'pf' else set(i.wr), i.kind, i.tag, gen))

def finalize_waits(blocks):
    for b in blocks:
        out = []
        for i in b.ins:
            if i.kind == 'wait' and i.wait is not None:
                parts = []
                if i.wait['vm'] is not None: parts.append('vmcnt(%d)' % i.wait['vm'])
                if i.wait['lgkm'] is not None: parts.append('lgkmcnt(%d)' % i.wait['lgkm'])
                if not parts: continue
                j = I('s_waitcnt ' + ' '.join(parts))
                out.append(j)
            else:
                out.append(i)
        b.ins = out

def check_hazards(trace, passes=4):
    seq = [i for b in trace for i in b.ins if i.kind != 'label']
    errs = []
    RAW = {4: 8, 8: 12}[passes]; OVL = {4: 6, 8: 10}[passes]; WARC = {4: 3, 8: 7}[passes]
    for k, p in enumerate(seq):
        dist = 0
        pw = set(p.wr)
        pv = {r for r in pw if r[0] in 'va'}
        ps = {r for r in pw if r[0] in ('s', 'vcc')}
        for j in range(k + 1, min(k + 24, len(seq))):
            c = seq[j]
            need = 0
            cr, cw = set(c.rd), set(c.wr)
            if p.kind == 'mfma':
                if c.kind == 'mfma':
                    if pw & set(c.ab): need = max(need, RAW)
                    if pw & set(c.srcc) and c.srcc != p.wr: need = max(need, OVL)
                    if pw & cw and not (pw & set(c.srcc)): need = max(need, RAW)
                elif c.kind in ('valu', 'ds', 'vmem'):
                    if pw & (cr | cw): need = max(need, RAW)
                if c.kind == 'valu' and set(p.srcc) & cw: need = max(need, WARC)
            elif p.kind == 'valu':
                if c.kind == 'mfma' and pv & cr: need = max(need, 2)
                if c.kind == 'valu':
                    if p.is_trans() and not c.is_trans() and pv & cr: need = max(need, 1)
                    if c.op.startswith('v_permlane') and pv & cr: need = max(need, 2)
                    if c.is_dpp() and pv & cr: need = max(need, 2)
                    if c.op.startswith('v_readfirstlane') or c.op.startswith('v_readlane'):
                        if pv & cr: need = max(need, 1)
                        if ps & cr: need = max(need, 4)
                    if ps & cr: need = max(need, 2)
                    if ('exec', 0) in pw and c.is_dpp(): need = max(need, 5)
                if c.kind == 'vmem' and ps & cr: need = max(need, 5)
                if c.kind == 'mfma' and ('exec', 0) in pw: need = max(need, 4)
            elif p.kind == 'salu':
                if ('m0', 0) in pw and c.kind == 'vmem' and c.lds_dma: need = max(need, 1)
            elif p.kind == 'vmem' and p.store_data:
                if set(p.store_data) & cw: need = max(need, 2 if c.kind == 'valu' else 1)
            if dist < need:
                errs.append('hazard: need %d have %d: [%s] -> [%s]' % (need, dist, p.text, c.text))
            dist += c.states()
            if dist >= 20: break
    return errs

def render(blocks):
    out = []
    for b in blocks:
        for i in b.ins:
            out.append(i.text if i.kind == 'label' else '  ' + i.text)
    return '\n'.join(out) + '\n'
```

```python
import sys, math
from asmlib import *

NAME = 'gated_mix__compressed_kv_cla__moe_arch_mod__prompt'

KBUF  = 0
VBUF  = 16 << 20
CTXB  = 32 << 20
PART  = 48 << 20
MISC  = 68 << 20
GBUF  = MISC
KEYB  = MISC + 8192
YACC  = MISC + 16384
FLAG  = MISC + 65536
TIMB  = MISC + (1 << 19)
WS_BYTES = 70 << 20
F_KV, F_CA, F_CB, F_PL, F_PH, F_FF = range(6)
OOB = 0x7ffffff0

XC, XA, XB = 0, 32768, 65536
WK0, WV0, WK1, WV1 = 98304, 114688, 131072, 147456
LDS_BYTES = 163840

def srd(n): return 's[%d:%d]' % (n, n + 3)
R_WS, R_X, R_C, R_WK, R_WV, R_WQ, R_WO, R_OUT, R_DBG, R_WR, R_GW, R_WG, R_WU, R_WD = range(4, 60, 4)
sW, sX, sY, sJ, sH = 60, 61, 62, 63, 3
sCo = [None] + list(range(64, 71))
sWo = [None] + list(range(71, 74))
sXo = [None] + list(range(74, 81))
sMC, sMW = 81, 82
sT0, sT1, sT2, sT3 = 83, 84, 85, 86
sSt = 87
sRet = 88
sTs = 90
sCnt = 92
sTok = 93
sXcc, sLocal = 0, 1
sK, sV, sR, sOld, sD, sSpin = 64, 65, 66, 67, 68, 69
sTri = list(range(71, 76)); sNone = list(range(76, 81))
def so(lst, i): return '0' if lst[i] is None else 's%d' % lst[i]

def v4(n): return 'v[%d:%d]' % (n, n + 3)
def a4(n): return 'a[%d:%d]' % (n, n + 3)
def rr(r, n=4):
    f, i = r
    return '%s[%d:%d]' % (f, i, i + n - 1) if n > 1 else '%s%d' % (f, i)
def mfma(d, a, b, c):
    return 'v_mfma_f32_16x16x32_bf16 %s, %s, %s, %s' % (rr(d), rr(a), rr(b), c if isinstance(c, str) else rr(c))

vC = [0, 1]; vW = [2, 3]; vRC = [4, 5]; vRW = list(range(6, 14)); vL16 = 14; vT = 15
vRX2 = [16, 17]; vRd = 18; vPoll = 19; vE = [20, 21]; vM = 22; vM2 = 23; vB = 24; vLs = 28
QB = 32; PB = 160; NB = 192; vTs = 208; vU = 212
def qacc(i, qt): return ('v', QB + (qt * 8 + i) * 4)
def qfrag(qt, ds): return qacc(2 * ds, qt)
def hole(qt, n): return qacc(2 * n + 1, qt)
def stile(mode, par, kt, qt):
    if mode == 'd': return hole(qt, 2 * par + kt)
    return hole((qt - 2) * 2 + (kt >> 1), 2 * par + (kt & 1))
def pfrag(mode, par, qt, ks):
    n = qt if mode == 'd' else (qt - 2) * 2 + ks
    return ('v', PB + 16 * par + 4 * n)
def negm(qt): return ('v', NB + 4 * qt)
def oacc(dt, qt): return ('a', (qt * 8 + dt) * 4)
def fifo(n): return ('a', 128 + 4 * (n & 15))
vWo = list(range(228, 237)); vRO = [237, 238, 239]
vX = 240
def pctx(blk, n, qt, ks):
    if n == 0: return qfrag(2 * blk + qt, ks)
    i = ((n - 1) * 8 + qt * 4 + ks) * 4
    return ('a', 64 * blk + i) if i < 64 else ('a', 192 + 32 * blk + i - 64)
def lacc(u, qt):
    n = 2 * u + qt
    return hole(n >> 2, n & 3) if n < 16 else ('v', PB + 4 * (n - 16))
def hacc(u, qt): return ('v', PB + 8 + 8 * (u % 3) + 4 * qt)
sWoS = [12, 13, 14, 15]; sPc = [16, 17, 18]; sPart = 19; sU0 = 20; sRow = 21; sItem = 22; sRsel = 23
BIGN = 0xf1800000
THR = 0x49800000
QSCALE = 0x3e0293ee

class Gen:
    def __init__(self, stop=None, stamps=False):
        self.stop = stop; self.stamps = stamps
        self.blocks = []; self.tail = []
        self.nstamp = 0; self.uid = 0
    def blk(self, name, tail=False):
        b = Block(name); (self.tail if tail else self.blocks).append(b); return b
    def lab(self, p):
        self.uid += 1; return 'L_%s_%d' % (p, self.uid)
    STAMP = [96, 97, 98, 99, 100, 101, 40, 41, 42, 43, 44, 45, 46, 47]
    def stamp(self, n, cyc=False):
        if not self.stamps: return []
        return ['%s s[%d:%d]' % ('s_memtime' if cyc else 's_memrealtime', sTs, sTs + 1), 's_waitcnt lgkmcnt(0)',
                's_mov_b32 s%d, s%d' % (self.STAMP[n], sTs)]

    def setup(self):
        b = self.blk('setup')
        b('s_cmp_ge_u32 s2, 256\ns_cbranch_scc1 L_end')
        b('s_load_dwordx16 s[64:79], s[0:1], 0\ns_load_dwordx8 s[80:87], s[0:1], 64')
        b('s_load_dwordx4 s[88:91], s[0:1], 96\ns_load_dwordx2 s[92:93], s[0:1], 112')
        b('v_lshrrev_b32 v16, 6, v0\nv_and_b32 v17, 63, v0')
        b('s_and_b32 s%d, s2, 7' % sX)
        b('v_readfirstlane_b32 s%d, v16' % sW)
        b('s_lshr_b32 s%d, s2, 3\ns_and_b32 s%d, s%d, 3' % (sY, sY, sY))
        b('s_lshr_b32 s%d, s2, 5' % sJ)
        b('s_lshl_b32 s%d, s%d, 2\ns_add_u32 s%d, s%d, s%d' % (sH, sX, sH, sH, sY))
        b('v_lshlrev_b32 v%d, 4, v17' % vL16)
        sizes = {R_WS: WS_BYTES, R_X: 2359296, R_C: 2097152, R_WK: 4194304, R_WV: 4194304, R_WQ: 4718592,
                 R_WO: 4718592, R_OUT: 2359296, R_DBG: 256, R_WR: 1152, R_GW: 1152, R_WG: 5308416,
                 R_WU: 5308416, R_WD: 5308416}
        for r, sz in sizes.items():
            b('s_mov_b32 s%d, %d\ns_mov_b32 s%d, 0x20000' % (r + 2, sz, r + 3))
        l = 17
        b('v_lshrrev_b32 v18, 3, v%d\nv_lshrrev_b32 v19, 4, v%d\nv_and_b32 v20, 7, v%d' % (l, l, l))
        b('v_xor_b32 v20, v20, v19\nv_lshlrev_b32 v20, 4, v20')
        b('s_lshl_b32 s94, s%d, 18\ns_lshl_b32 s95, s%d, 16\ns_add_u32 s94, s94, s95' % (sJ, sW))
        b('v_lshl_add_u32 v21, v18, 10, v20\nv_add_u32 v%d, s94, v21' % vC[0])
        b('v_xor_b32 v%d, 64, v%d' % (vC[1], vC[0]))
        b('v_bfe_u32 v21, v%d, 1, 3\nv_xor_b32 v21, v21, v19\nv_lshlrev_b32 v21, 5, v21' % l)
        b('v_and_b32 v22, 1, v%d\nv_lshl_add_u32 v21, v22, 4, v21\nv_lshl_add_u32 v21, v19, 13, v21' % l)
        b('s_lshl_b32 s94, s%d, 17\ns_lshl_b32 s95, s%d, 8\ns_add_u32 s94, s94, s95' % (sW, sH))
        b('v_add_u32 v%d, s94, v21\nv_xor_b32 v%d, 0x80, v%d' % (vW[0], vW[1], vW[0]))
        b('s_waitcnt lgkmcnt(0)')
        ptr = {R_X: 64, R_C: 66, R_WQ: 68, R_WK: 70, R_WV: 72, R_WO: 74, R_WR: 78, R_WG: 80, R_WU: 82,
               R_WD: 84, R_GW: 86, R_OUT: 88, R_DBG: 90, R_WS: 92}
        for r, p in ptr.items():
            b('s_mov_b64 s[%d:%d], s[%d:%d]' % (r, r + 1, p, p + 1))
        b('s_getreg_b32 s%d, hwreg(HW_REG_XCC_ID, 0, 4)' % sXcc)
        for t in self.stamp(0): b(t)
        for i in range(1, 8): b('s_mov_b32 s%d, %d' % (sCo[i], (i & 3) * 7168 + (i >> 2) * 32768))
        for i in range(1, 4): b('s_mov_b32 s%d, %d' % (sWo[i], i * 31744))
        b('s_lshl_b32 s%d, s%d, 13\ns_lshl_b32 s%d, s%d, 12' % (sMC, sW, sMW, sW))
        return b

    def kv_dma(self, s):
        p = s & 1; out = []
        for i in range(8):
            g = []
            if i % 4 == 0: g.append('s_add_u32 m0, s%d, %d' % (sMC, XA + p * 32768 + (i >> 2) * 4096)); out.append(g); g = []
            g.append('buffer_load_dwordx4 v%d, %s, %s offen offset:%d lds @pj' % (vC[i & 1], srd(R_C), so(sCo, i), (i & 3) * 1024))
            out.append(g)
        for R, base in ((R_WK, WK0), (R_WV, WV0)):
            out.append(['s_add_u32 m0, s%d, %d' % (sMW, base + p * 32768)])
            for i in range(4):
                out.append(['buffer_load_dwordx4 v%d, %s, %s offen offset:%d lds @pj' % (vW[i >> 1], srd(R), so(sWo, i), i * 1024)])
        return out
    def kv_dma_adv(self):
        return ['v_add_u32 v%d, 0x80, v%d' % (vC[0], vC[0]), 'v_add_u32 v%d, 0x80, v%d' % (vC[1], vC[1]),
                'v_add_u32 v%d, 0x80000, v%d' % (vW[0], vW[0]), 'v_add_u32 v%d, 0x80000, v%d' % (vW[1], vW[1])]
    QX = [XC, XA, XB]; QW = [WK0, WV0, WK1]
    def q_dma(self, s):
        sl = s % 3; out = []
        for i in range(8):
            if i % 4 == 0: out.append(['s_add_u32 m0, s%d, %d' % (sMC, self.QX[sl] + (i >> 2) * 4096)])
            out.append(['buffer_load_dwordx4 v%d, %s, %s offen offset:%d lds @q%d' % (vC[i & 1], srd(R_X), so(sXo, i), (i & 3) * 1024, s)])
        out.append(['s_add_u32 m0, s%d, %d' % (sMW, self.QW[sl])])
        for i in range(4):
            out.append(['buffer_load_dwordx4 v%d, %s, %s offen offset:%d lds @q%d' % (vW[i >> 1], srd(R_WQ), so(sWo, i), i * 1024, s)])
        return out

    @staticmethod
    def merge_m0(groups):
        out = []; pend = []
        for g in groups:
            if g[0].startswith('s_add_u32 m0'):
                if out: out[-1] = out[-1] + g
                else: out.append(g)
            else: out.append(g)
        return out

    def start(self):
        b = self.blk('start')
        l = 17
        b('v_and_b32 v22, 31, v%d\nv_lshlrev_b32 v22, 4, v22' % l)
        b('v_lshrrev_b32 v23, 5, v%d' % l)
        b('s_lshl_b32 s94, s2, 3\ns_lshl_b32 s95, s%d, 1\ns_add_u32 s94, s94, s95' % sW)
        b('v_add_u32 v23, s94, v23')
        b('s_movk_i32 s95, 1152\nv_mul_lo_u32 v24, v23, s95\nv_add_u32 v24, v24, v22')
        b('v_cmp_gt_u32 vcc, 0x80, v22\nv_mov_b32 v26, %d\nv_add_u32 v25, 0x400, v24' % OOB)
        b('v_cndmask_b32 v25, v26, v25, vcc')
        b('buffer_load_dwordx4 v[28:31], v24, %s, 0 offen' % srd(R_X))
        b('buffer_load_dwordx4 v[32:35], v24, %s, 0 offen offset:512' % srd(R_X))
        b('buffer_load_dwordx4 v[36:39], v25, %s, 0 offen' % srd(R_X))
        for k, R in enumerate((R_WR, R_GW)):
            for i in range(3):
                b('buffer_load_dwordx4 %s, v22, %s, 0 offen offset:%d' % (v4(40 + 12 * k + 4 * i), srd(R), 512 * i))
        for s in (0, 1):
            for g in self.kv_dma(s):
                for t in g:
                    b(t)
                    if t.startswith('s_add_u32 m0'): b('s_nop 0')
            for t in self.kv_dma_adv(): b(t)
        b('v_and_b32 v64, 15, v%d\nv_lshrrev_b32 v65, 4, v%d\nv_bfe_u32 v66, v%d, 1, 3' % (l, l, l))
        b('v_xor_b32 v66, v66, v65\nv_lshlrev_b32 v66, 4, v66\nv_lshl_add_u32 v66, v64, 7, v66')
        b('s_and_b32 s94, s%d, 1\ns_lshl_b32 s94, s94, 14\ns_add_u32 s94, s94, %d' % (sW, XA))
        b('v_add_u32 v%d, s94, v66\nv_xor_b32 v%d, 64, v%d' % (vRC[0], vRC[1], vRC[0]))
        b('v_bfe_u32 v66, v%d, 2, 2\nv_and_b32 v67, 1, v65\nv_lshl_add_u32 v67, v67, 2, v66' % l)
        b('v_lshl_add_u32 v68, v65, 3, v66\nv_lshlrev_b32 v68, 8, v68\nv_and_b32 v69, 3, v%d' % l)
        b('v_lshl_add_u32 v68, v69, 3, v68')
        b('s_lshr_b32 s94, s%d, 1\ns_lshl_b32 s94, s94, 14\ns_add_u32 s94, s94, %d' % (sW, WK0))
        b('v_add_u32 v68, s94, v68')
        for u in range(8):
            b('v_xor_b32 v69, %d, v67\nv_lshl_add_u32 v%d, v69, 5, v68' % (u, vRW[u]))
        b('v_mov_b32 v72, 0\nv_mov_b32 v73, 0\nv_mov_b32 v74, 0\nv_mov_b32 v75, 0')
        b('s_lshl_b32 s94, s2, 6\ns_add_u32 s94, s94, %d' % FLAG)
        b('v_lshlrev_b32 v70, 14, v%d\nv_add_u32 v70, s94, v70' % l)
        b('s_cmp_eq_u32 s%d, 0\ns_cselect_b32 s95, 6, 0' % sW)
        b('v_cmp_gt_u32 vcc, s95, v%d\ns_nop 1\nv_cndmask_b32 v70, v26, v70, vcc' % l)
        b('buffer_store_dword v72, v70, %s, 0 offen sc1' % srd(R_WS))
        b('s_lshl_b32 s94, s2, 12\ns_lshl_b32 s95, s%d, 10\ns_add_u32 s94, s94, s95\ns_add_u32 s94, s94, %d' % (sW, YACC))
        b('s_cmp_lt_u32 s2, 8\ns_cselect_b32 s94, s94, %d' % OOB)
        b('v_add_u32 v71, s94, v%d' % vL16)
        b('buffer_store_dwordx4 v[72:75], v71, %s, 0 offen sc1' % srd(R_WS))
        b.autowait()
        b('v_mov_b32 v64, 0\nv_mov_b32 v65, 0')
        for i in range(12):
            b('v_dot2_f32_bf16 v64, v%d, v%d, v64\nv_dot2_f32_bf16 v65, v%d, v%d, v65' % (28 + i, 40 + i, 28 + i, 52 + i))
        b('s_nop 2')
        for dpp in ('quad_perm:[1,0,3,2]', 'quad_perm:[2,3,0,1]', 'row_half_mirror', 'row_mirror'):
            b('v_add_f32_dpp v64, v64, v64 %s row_mask:0xf bank_mask:0xf' % dpp)
            b('v_add_f32_dpp v65, v65, v65 %s row_mask:0xf bank_mask:0xf' % dpp)
            b('s_nop 0')
        b('v_mov_b32 v66, v64\nv_mov_b32 v67, v65\ns_nop 1')
        b('v_permlane16_swap_b32 v64, v66\nv_permlane16_swap_b32 v65, v67')
        b('v_add_f32 v64, v64, v66\nv_add_f32 v65, v65, v67')
        b('v_mul_f32 v65, 0xbfb8aa3b, v65\nv_exp_f32 v65, v65')
        b('v_ashrrev_i32 v66, 31, v64\nv_or_b32 v66, 0x80000000, v66\nv_xor_b32 v66, v66, v64')
        b('v_add_f32 v65, 1.0, v65\nv_rcp_f32 v65, v65')
        b('v_and_b32 v66, 0xfffff800, v66\nv_sub_u32 v67, 0x7ff, v23\nv_or_b32 v66, v66, v67')
        b('v_mov_b32 v67, v66\nv_lshlrev_b32 v68, 2, v23\nv_add_u32 v68, %d, v68' % GBUF)
        b('v_permlane32_swap_b32 v66, v67')
        b('v_cmp_eq_u32 vcc, 0, v22\nv_max_u32 v66, v66, v67\ns_nop 0\nv_cndmask_b32 v68, v26, v68, vcc')
        b('buffer_store_dword v65, v68, %s, 0 offen sc1' % srd(R_WS))
        b('s_lshl_b32 s94, s2, 4\ns_lshl_b32 s95, s%d, 2\ns_add_u32 s94, s94, s95\ns_add_u32 s94, s94, %d' % (sW, KEYB))
        b('v_mov_b32 v69, s94\nv_cmp_eq_u32 vcc, 0, v%d\ns_nop 1\nv_cndmask_b32 v69, v26, v69, vcc' % l)
        b('buffer_store_dword v66, v69, %s, 0 offen sc1' % srd(R_WS))
        b('s_waitcnt vmcnt(20)\ns_barrier')
        for t in self.kv_reads(0): b(t)
        b('s_cmp_ge_u32 s%d, 2\ns_cbranch_scc1 L_kv1' % sW)
        return b

    @staticmethod
    def cfrag(k, t): return ('a', 128 + 64 * (k & 1) + 4 * t)
    @staticmethod
    def wfrag(k, u): return ('a', 128 + 64 * (k & 1) + 32 + 4 * u)
    @staticmethod
    def kvacc(i, jj):
        n = ((i >> 1) * 8 + jj) * 2 + (i & 1)
        return ('v', 16 + 4 * n) if n < 60 else ('a', 112 + 4 * (n - 60))
    def kv_reads(self, k):
        p, ks = (k >> 1) & 1, k & 1; out = []
        for t in range(8):
            f = self.wfrag(k, t)
            for hf in range(2):
                out.append('ds_read_b64_tr_b16 %s, v%d offset:%d' % (rr((f[0], f[1] + 2 * hf), 2), vRW[t], p * 32768 + (32 * ks + 4 * hf) * 256))
            out.append('ds_read_b128 %s, v%d offset:%d' % (rr(self.cfrag(k, t)), vRC[ks], p * 32768 + t * 2048))
        return out
    @staticmethod
    def qxfrag(k, t): return ('a', 128 + 48 * (k & 1) + 4 * t)
    @staticmethod
    def qwfrag(k, u): return ('a', 128 + 48 * (k & 1) + 16 + 4 * u)
    def q_reads(self, k):
        sl, ks = (k >> 1) % 3, k & 1; out = []
        for u in range(8):
            f = self.qwfrag(k, u)
            for hf in range(2):
                out.append('ds_read_b64_tr_b16 %s, v%d offset:%d' % (rr((f[0], f[1] + 2 * hf), 2), vRW[u], self.QW[sl] - WK0 + (32 * ks + 4 * hf) * 256))
            if u < 4:
                if sl < 2: out.append('ds_read_b128 %s, v%d offset:%d' % (rr(self.qxfrag(k, u)), vRC[ks], self.QX[sl] + u * 2048))
                else: out.append('ds_read_b128 %s, v%d offset:%d' % (rr(self.qxfrag(k, u)), vRX2[ks], u * 2048))
        return out

    def kv_phase(self, a):
        b = self.blk('kv%d' % a)
        if a == 1: b('L_kv1:')
        b.autowait()
        for t in self.stamp(1): b(t)
        for k in range(16):
            s = k >> 1
            last = k == 15
            order = [(i, jj) for i in range(8) for jj in range(8)]
            if last: order = [(2 * a2 + h, jj) for a2 in range(4) for jj in range(8) for h in range(2)]
            ms = []
            for (i, jj) in order:
                A, B = (self.wfrag(k, i), self.cfrag(k, jj)) if a == 0 else (self.cfrag(k, i), self.wfrag(k, jj))
                d = self.kvacc(i, jj)
                ms.append(mfma(d, A, B, '0' if k == 0 else d))
            gaps = [[] for _ in range(64)]
            pos = 0
            if k & 1:
                gaps[0] += ['WAIT q0:0 lgkm0' if s == 7 else 's_waitcnt vmcnt(0) lgkmcnt(0)', 's_barrier']
                pos = 1
                if s == 0:
                    gaps[pos] += ['s_cmp_eq_u32 s%d, 0' % sW, 's_cselect_b32 s94, s2, %d' % OOB, 'v_mov_b32 v%d, s94' % vT]
                    gaps[pos + 1] += ['s_or_b32 s%d, s%d, 0x80' % (sXcc, sXcc)]
                    pos += 2
                    self.vOne = None
                if s <= 5: dm = self.kv_dma(s + 2)
                elif s == 6: dm = self.q_dma(0) + [self.kv_dma_adv()] + self.q_dma(1)
                else: dm = self.q_dma(2)
                dm = self.merge_m0(dm)
                for g in dm:
                    gaps[pos] += g; pos += 1
                gaps[pos] += self.kv_dma_adv()[:2]; gaps[pos + 1] += self.kv_dma_adv()[2:]; pos += 2
            if k == 11:
                q = []
                q.append(['v_lshrrev_b32 v%d, 7, v%d' % (vT, vL16), 'v_and_b32 v%d, 0x70, v%d' % (vC[0], vC[0])])
                q.append(['s_lshl_b32 s94, s%d, 7' % sJ, 's_lshl_b32 s95, s%d, 5' % sW, 's_add_u32 s94, s94, s95', 'v_add_u32 v%d, s94, v%d' % (vT, vT)])
                q.append(['s_movk_i32 s95, 1152', 'v_mul_lo_u32 v%d, v%d, s95' % (vT, vT)])
                q.append(['v_add_u32 v%d, v%d, v%d' % (vC[0], vC[0], vT), 'v_xor_b32 v%d, 64, v%d' % (vC[1], vC[0])])
                q.append(['v_subrev_u32 v%d, 0x400000, v%d' % (vW[0], vW[0]), 'v_subrev_u32 v%d, 0x400000, v%d' % (vW[1], vW[1])])
                q.append(['s_lshl_b32 s94, s%d, 1' % sJ, 's_sub_u32 s94, 15, s94', 's_mul_i32 s94, s94, %d' % (128 * 1152)])
                for i in range(1, 8):
                    q.append(['s_mov_b32 s%d, %d' % (sXo[i], (i & 3) * 8192)] if i < 4 else ['s_add_u32 s%d, s94, %d' % (sXo[i], (i & 3) * 8192)])
                for g in q:
                    gaps[pos] += g; pos += 1
            if not last:
                rd = self.kv_reads(k + 1)
                pos = max(pos, 2)
                assert pos + len(rd) <= 60, (k, pos)
                for t in rd:
                    gaps[pos].insert(0, t); pos += 1
            else:
                fix = []
                fix.append(['s_and_b32 s94, s%d, 1' % sW, 's_lshl_b32 s94, s94, 14', 's_add_u32 s94, s94, %d' % XA,
                            's_sub_u32 s94, s%d, s94' % sMC, 'v_add_u32 v%d, s94, v%d' % (vRC[0], vRC[0]), 'v_add_u32 v%d, s94, v%d' % (vRC[1], vRC[1])])
                if a == 1:
                    for u in range(0, 8, 2):
                        fix.append(['v_subrev_u32 v%d, 0x4000, v%d' % (vRW[u], vRW[u]), 'v_subrev_u32 v%d, 0x4000, v%d' % (vRW[u + 1], vRW[u + 1])])
                for g in fix:
                    gaps[pos] += g; pos += 1
                rd = self.q_reads(0)
                rpos = 40
                for t in rd:
                    gaps[rpos].insert(0, t); rpos += 1
                base = KBUF if a == 0 else VBUF
                gaps[1] += ['s_lshl_b32 s%d, s%d, 19' % (sSt, sH), 's_lshl_b32 s94, s%d, 16' % sJ, 's_add_u32 s%d, s%d, s94' % (sSt, sSt)]
                gaps[2] += ['s_and_b32 s94, s%d, 1' % sW, 's_lshl_b32 s94, s94, 15', 's_add_u32 s%d, s%d, s94' % (sSt, sSt)]
                if base: gaps[3] += ['s_add_u32 s%d, s%d, %d' % (sSt, sSt, base)]
                post = []
                for pr in range(32):
                    a2, jj = pr >> 3, pr & 7
                    d0, d1 = self.kvacc(2 * a2, jj), self.kvacc(2 * a2 + 1, jj)
                    g = []
                    if d0[0] == 'a':
                        t0 = 16 + 8 * (pr - 30)
                        for r in range(4):
                            g.append('v_accvgpr_read_b32 v%d, a%d' % (t0 + r, d0[1] + r))
                            g.append('v_accvgpr_read_b32 v%d, a%d' % (t0 + 4 + r, d1[1] + r))
                        d0, d1 = ('v', t0), ('v', t0 + 4)
                    x, y = d0[1], d1[1]
                    g += ['v_cvt_pk_bf16_f32 v%d, v%d, v%d' % (x, x, x + 1), 'v_cvt_pk_bf16_f32 v%d, v%d, v%d' % (x + 1, x + 2, x + 3),
                          'v_cvt_pk_bf16_f32 v%d, v%d, v%d' % (x + 2, y, y + 1), 'v_cvt_pk_bf16_f32 v%d, v%d, v%d' % (x + 3, y + 2, y + 3)]
                    off = jj * 4096 + a2 * 1024 if a == 0 else a2 * 8192 + jj * 1024
                    st = ['s_add_u32 s%d, s%d, %d' % (sT0 + (pr & 1), sSt, off & ~4095),
                          'buffer_store_dwordx4 %s, v%d, %s, s%d offen offset:%d @kvst' % (v4(x), vL16, srd(R_WS), sT0 + (pr & 1), off & 4095)]
                    post.append((2 * pr + 1, g, st))
                spill = []
                for (m, g, st) in post:
                    gp = m + 4
                    if gp + 2 < 64:
                        gaps[gp] += g[:2]; gaps[gp + 1] += g[2:]; gaps[gp + 2] = st + gaps[gp + 2]
                    else:
                        spill.append((g, st))
            if k == 13:
                gaps[58] += ['v_lshrrev_b32 v%d, 2, v%d' % (vT, vL16)]
                gaps[59] = ['buffer_load_dword v%d, v%d, %s, 0 offen sc1' % (vT, vT, srd(R_DBG))] + gaps[59]
            if k == 1:
                gaps[40] += ['v_mov_b32 v%d, s%d' % (vL16, sXcc)]
                gaps[41] = ['buffer_store_byte v%d, v%d, %s, 0 offen sc1' % (vL16, vT, srd(R_DBG))] + gaps[41]
                gaps[43] += ['v_mbcnt_lo_u32_b32 v%d, -1, 0' % vL16, 'v_mbcnt_hi_u32_b32 v%d, -1, v%d' % (vL16, vL16)]
                gaps[44] += ['v_lshlrev_b32 v%d, 4, v%d' % (vL16, vL16)]
            emit_gaps(b, ms, gaps)
            if last:
                b('s_nop 7')
                for g, st in spill:
                    for t in g + st: b(t)
        if a == 0: b('s_branch L_q')
        return b

    def spin(self, load, check, back):
        lab = self.lab('spin'); b = self.blk(lab, tail=True)
        b('%s:\ns_mov_b32 s%d, 0x4000' % (lab, sSpin))
        b('%s_l:\ns_sleep 4' % lab)
        for t in load: b(t)
        b('s_waitcnt vmcnt(0)')
        for t in check: b(t)
        b('s_cbranch_scc1 %s' % back)
        b('s_sub_u32 s%d, s%d, 1\ns_cmp_lg_u32 s%d, 0\ns_cbranch_scc1 %s_l\ns_branch %s' % (sSpin, sSpin, sSpin, lab, back))
        return lab
    def flag_addr(self, vdst, kind, base_expr, nlanes, stride):
        return base_expr + ['s_lshl_b32 s94, s94, 6', 's_add_u32 s94, s94, %d' % (FLAG + kind * 16384),
                'v_mul_u32_u24 v%d, %d, v%d' % (vdst, stride * 4, vL16), 'v_add_u32 v%d, s94, v%d' % (vdst, vdst),
                'v_cmp_gt_u32 vcc, %d, v%d' % (nlanes * 16, vL16), 'v_mov_b32 v%d, %d' % (vM2, OOB), 's_nop 0',
                'v_cndmask_b32 v%d, v%d, v%d, vcc' % (vdst, vM2, vdst)]
    def poll(self, vaddr, vdat, nlanes):
        load = ['buffer_load_dword v%d, v%d, %s, 0 offen sc1' % (vdat, vaddr, srd(R_WS))]
        chk = ['v_cmp_eq_u32 vcc, 1, v%d' % vdat, 's_and_b32 s94, vcc_lo, %d' % ((1 << nlanes) - 1), 's_cmp_eq_u32 s94, %d' % ((1 << nlanes) - 1)]
        back = self.lab('back')
        lab = self.spin(load, chk, back)
        return load, chk + ['s_cbranch_scc0 %s' % lab, back + ':']
    def publish(self, kind, release):
        out = []
        if release:
            lab = self.lab('rel'); back = self.lab('back')
            b = self.blk(lab, tail=True)
            b('%s:\nbuffer_wbl2 sc1\ns_waitcnt vmcnt(0)\ns_branch %s' % (lab, back))
            out += ['s_cmp_eq_u32 s%d, 0' % sLocal, 's_cbranch_scc1 %s' % lab, back + ':']
        out += ['s_lshl_b32 s94, s2, 6', 's_add_u32 s94, s94, %d' % (FLAG + kind * 16384), 's_cmp_eq_u32 s%d, 0' % sW,
                's_cselect_b32 s94, s94, %d' % OOB, 'v_mov_b32 v%d, s94' % vM, 'v_mov_b32 v%d, 1' % vM2,
                'buffer_store_dword v%d, v%d, %s, 0 offen sc1' % (vM2, vM, srd(R_WS))]
        return out
    def acquire(self):
        lab = self.lab('acq'); back = self.lab('back')
        b = self.blk(lab, tail=True)
        b('%s:\nbuffer_inv sc1\ns_waitcnt vmcnt(0)\ns_branch %s' % (lab, back))
        return ['s_cmp_eq_u32 s%d, 0' % sLocal, 's_cbranch_scc1 %s' % lab, back + ':']

    def at_dma(self, kpart=True, vpart=True, m0=None):
        out = []
        def m0set(off):
            if m0 is None: return ['s_add_u32 m0, s%d, %d' % (sOld, off)]
            return ['s_add_u32 m0, s%d, %d' % (sMW, m0 + off)]
        if kpart:
            out.append(m0set(0))
            for i in range(4):
                out.append(['buffer_load_dwordx4 v%d, %s, s%d offen offset:%d sc1 lds @kv' % (vL16, srd(R_WS), sK, i * 1024)])
            out[-1].append('s_add_u32 s%d, s%d, 16384' % (sK, sK))
        if vpart:
            out.append(m0set(16384))
            for i in range(4):
                out.append(['buffer_load_dwordx4 v%d, %s, s%d offen offset:%d sc1 lds @kv' % (vL16, srd(R_WS), sV, i * 1024)])
            out[-1].append('s_add_u32 s%d, s%d, 16384' % (sV, sV))
        return self.merge_m0(out)
    def at_rotate(self):
        return (['s_add_u32 s%d, s%d, s%d' % (sOld, sR, sMW), 's_add_u32 s%d, s%d, 32768' % (sR, sR),
                 's_cmp_eq_u32 s%d, 98304' % sR, 's_cselect_b32 s%d, 0, s%d' % (sR, sR)],
                ['v_add_u32 v%d, s%d, v%d' % (vRd, sR, vL16)])

    def ffn(self):
        b = self.blk('ffn')
        b('L_q:')
        b.autowait()
        chk = ['v_and_b32 v%d, 0x80808080, v%d' % (vM, vT), 'v_cmp_ne_u32 vcc, 0x80808080, v%d' % vM, 's_cmp_eq_u64 vcc, 0']
        back = self.lab('back')
        lab = self.spin(['v_lshrrev_b32 v%d, 2, v%d' % (vT, vL16), 'buffer_load_dword v%d, v%d, %s, 0 offen sc1' % (vT, vT, srd(R_DBG))], chk, back)
        for t in chk + ['s_cbranch_scc0 %s' % lab, back + ':']: b(t)
        b('s_mov_b32 s%d, %d' % (sT0, KEYB))
        for i in range(4): b('buffer_load_dwordx4 %s, v%d, %s, s%d offen offset:%d sc1' % (v4(32 + 4 * i), vL16, srd(R_WS), sT0, 1024 * i))
        b('s_and_b32 s94, s%d, 3\ns_lshl_b32 s94, s94, 3\nv_bfe_u32 v%d, v%d, s94, 8' % (sX, vM, vT))
        b('s_lshr_b32 s94, s%d, 2\ns_lshl_b32 s94, 0x55555555, s94\nv_cmp_ne_u32 vcc, s%d, v%d' % (sX, sXcc, vM))
        b('s_or_b32 s95, vcc_lo, vcc_hi\ns_and_b32 s95, s95, s94\ns_cselect_b32 s%d, 0, 1' % sLocal)
        G0, U0, D0, X0 = 64, 100, 136, 172
        b('s_cmp_ge_u32 s2, 144\ns_cbranch_scc1 L_ffn_a')
        b('v_lshrrev_b32 v24, 6, v%d\nv_and_b32 v25, 0x30, v%d' % (vL16, vL16))
        b('s_mul_i32 s94, s%d, 144\nv_add_u32 v26, s94, v24' % sW)
        b('v_mul_u32_u24 v27, 0x2400, v26\ns_lshl_b32 s94, s2, 6\nv_add3_u32 v27, v27, v25, s94')
        for i in range(9):
            b('s_mov_b32 s%d, %d' % (sT1, i * 16 * 9216))
            b('buffer_load_dwordx4 %s, v27, %s, s%d offen' % (v4(G0 + 4 * i), srd(R_WG), sT1))
            b('buffer_load_dwordx4 %s, v27, %s, s%d offen' % (v4(U0 + 4 * i), srd(R_WU), sT1))
        b('s_lshl_b32 s94, s2, 2\ns_add_u32 s94, s94, s%d\ns_mul_i32 s%d, s94, 9216' % (sW, sT1))
        for i in range(8):
            b('buffer_load_dwordx4 %s, v%d, %s, s%d offen' % (v4(D0 + 4 * i), vL16, srd(R_WD), sT1))
            b('s_add_u32 s%d, s%d, 1152' % (sT1, sT1))
        b('s_sub_u32 s%d, s%d, %d' % (sT1, sT1, 9216 - 1024))
        b('v_lshrrev_b32 v28, 7, v%d\nv_mul_u32_u24 v29, 0x480, v28\nv_and_b32 v30, 0x70, v%d\nv_add_u32 v29, v29, v30' % (vL16, vL16))
        b('buffer_load_dwordx4 %s, v29, %s, s%d offen' % (v4(D0 + 32), srd(R_WD), sT1))
        b('L_ffn_a:')
        b('s_waitcnt vmcnt(0)')
        b('v_max3_u32 v32, v32, v33, v34')
        for i in range(35, 47, 2): b('v_max3_u32 v32, v32, v%d, v%d' % (i, i + 1))
        b('v_max_u32 v32, v32, v47\ns_nop 1')
        for dpp in ('quad_perm:[1,0,3,2]', 'quad_perm:[2,3,0,1]', 'row_half_mirror', 'row_mirror'):
            b('v_max_u32_dpp v32, v32, v32 %s row_mask:0xf bank_mask:0xf\ns_nop 1' % dpp)
        self.xlane(b, 'v_max_u32', 32, 33)
        b('v_and_b32 v33, 0x7ff, v32\nv_sub_u32 v33, 0x7ff, v33\nv_and_b32 v32, 0xfffff800, v32')
        b('v_readfirstlane_b32 s%d, v33' % sTok)
        b('v_not_b32 v34, v32\nv_ashrrev_i32 v34, 31, v34\nv_or_b32 v34, 0x80000000, v34\nv_xor_b32 v32, v32, v34')
        b('v_mul_f32 v32, 0xbfb8aa3b, v32\nv_exp_f32 v32, v32\ns_nop 0\nv_add_f32 v32, 1.0, v32\nv_rcp_f32 v32, v32\ns_nop 0')
        b('v_readfirstlane_b32 s%d, v32' % sRsel)
        b('s_cmp_ge_u32 s2, 144\ns_cbranch_scc1 L_ffn_end')
        b('s_mul_i32 s%d, s%d, 1152\nv_lshlrev_b32 v26, 1, v26\ns_nop 2' % (sT1, sTok))
        for i in range(9): b('buffer_load_ushort v%d, v26, %s, s%d offen offset:%d' % (X0 + 2 * i, srd(R_X), sT1, 32 * i))
        for i in range(16): b('v_mov_b32 v%d, 0' % (32 + i))
        b('s_waitcnt vmcnt(0)')
        for i in range(9): b('v_lshlrev_b32 v%d, 16, v%d' % (X0 + 2 * i + 1, X0 + 2 * i))
        for i in range(9):
            for m, base in enumerate((G0, U0)):
                for d in range(4):
                    for h in range(2):
                        a = 32 + 8 * m + 2 * d + h
                        b('v_dot2_f32_bf16 v%d, v%d, v%d, v%d' % (a, base + 4 * i + d, X0 + 2 * i + h, a))
        b('s_nop 2')
        for e in range(8): b('v_permlane32_swap_b32 v%d, v%d' % (32 + e, 40 + e))
        for e in range(8): b('v_add_f32 v%d, v%d, v%d' % (32 + e, 32 + e, 40 + e))
        b('s_nop 0')
        for e in range(4): b('v_permlane16_swap_b32 v%d, v%d' % (32 + e, 36 + e))
        for e in range(4): b('v_add_f32 v%d, v%d, v%d' % (32 + e, 32 + e, 36 + e))
        for dpp in ('row_ror:4', 'row_ror:8'):
            for e in range(4): b('v_add_f32_dpp v%d, v%d, v%d %s row_mask:0xf bank_mask:0xf' % (32 + e, 32 + e, 32 + e, dpp))
        b('v_lshrrev_b32 v24, 9, v%d\nv_lshlrev_b32 v24, 7, v24\nv_bfe_u32 v28, v%d, 8, 1\nv_lshl_add_u32 v24, v28, 4, v24' % (vL16, vL16))
        b('v_lshl_add_u32 v24, v25, 1, v24\ns_lshl_b32 s94, s%d, 8\ns_add_u32 s94, s94, %d\nv_add_u32 v24, s94, v24' % (sW, WV1))
        b('ds_write_b128 v24, v[32:35]')
        b('v_mov_b32 v36, 0\nv_mov_b32 v37, 0\nv_mov_b32 v38, 0\nv_mov_b32 v39, 0')
        b('s_lshl_b32 s94, s%d, 10\ns_add_u32 s94, s94, %d\nv_add_u32 v28, s94, v%d\nds_write_b128 v28, v[36:39]' % (sW, WV1 + 4096, vL16))
        b('s_waitcnt lgkmcnt(0)\ns_barrier')
        b('v_bfe_u32 v24, v%d, 4, 3\ns_lshl_b32 s94, s%d, 5\ns_add_u32 s94, s94, %d\nv_lshl_add_u32 v24, v24, 2, s94' % (vL16, sW, WV1))
        for wv in range(4):
            b('ds_read_b32 v%d, v24 offset:%d\nds_read_b32 v%d, v24 offset:%d' % (32 + wv, 256 * wv, 36 + wv, 256 * wv + 128))
        b('s_waitcnt lgkmcnt(0)')
        b('v_add_f32 v32, v32, v33\nv_add_f32 v34, v34, v35\nv_add_f32 v36, v36, v37\nv_add_f32 v38, v38, v39\nv_add_f32 v32, v32, v34\nv_add_f32 v36, v36, v38')
        b('v_mul_f32 v33, 0xbfb8aa3b, v32\nv_exp_f32 v33, v33\ns_nop 0\nv_add_f32 v33, 1.0, v33\nv_rcp_f32 v33, v33\ns_nop 0')
        b('v_mul_f32 v32, v32, v33\nv_mul_f32 v32, v32, v36\nv_cvt_pk_bf16_f32 v32, v32, v32\nv_and_b32 v32, 0xffff, v32')
        b('v_lshrrev_b32 v33, 5, v%d\nv_and_b32 v33, 28, v33\nds_bpermute_b32 v34, v33, v32' % vL16)
        for e in range(16): b('v_mov_b32 v%d, 0' % (40 + e))
        for i in range(8):
            b('v_readlane_b32 s94, v32, %d\ns_lshl_b32 s95, s94, 16\ns_nop 0' % i)
            for d in range(4):
                b('v_dot2_f32_bf16 v%d, v%d, s94, v%d' % (40 + 2 * d, D0 + 4 * i + d, 40 + 2 * d))
                b('v_dot2_f32_bf16 v%d, v%d, s95, v%d' % (41 + 2 * d, D0 + 4 * i + d, 41 + 2 * d))
        b('s_waitcnt lgkmcnt(0)\nv_lshlrev_b32 v35, 16, v34')
        for d in range(4):
            b('v_dot2_f32_bf16 v%d, v%d, v34, v%d' % (48 + 2 * d, D0 + 32 + d, 48 + 2 * d))
            b('v_dot2_f32_bf16 v%d, v%d, v35, v%d' % (49 + 2 * d, D0 + 32 + d, 49 + 2 * d))
        b('v_lshlrev_b32 v24, 1, v%d\nv_add_u32 v24, %d, v24' % (vL16, WV1 + 4096))
        b('v_lshlrev_b32 v28, 1, v30\nv_add_u32 v28, %d, v28' % (WV1 + 4096 + 2048))
        for e in range(8): b('ds_add_f32 v24, v%d offset:%d' % (40 + e, 4 * e))
        for e in range(8): b('ds_add_f32 v28, v%d offset:%d' % (48 + e, 4 * e))
        b('s_waitcnt lgkmcnt(0)\ns_barrier')
        b('v_lshrrev_b32 v24, 2, v%d\ns_mul_i32 s94, s%d, 768\nv_add_u32 v24, s94, v24\nv_add_u32 v28, %d, v24' % (vL16, sW, WV1 + 4096))
        b('s_lshl_b32 s94, s%d, 12\ns_add_u32 s94, s94, %d\ns_cmp_eq_u32 s%d, 3\ns_cselect_b32 s%d, %d, s94' % (sX, YACC, sW, sT1, OOB))
        for i in range(3): b('ds_read_b32 v%d, v28 offset:%d' % (32 + i, 256 * i))
        b('s_waitcnt lgkmcnt(0)')
        for i in range(3): b('buffer_atomic_add_f32 v%d, v24, %s, s%d offen offset:%d' % (32 + i, srd(R_WS), sT1, 256 * i))
        b('L_ffn_end:\ns_waitcnt lgkmcnt(0)')
        return b

    def q_phase(self):
        b = self.blk('q')
        b.autowait()
        for t in self.stamp(2): b(t)
        fill = []
        fill += ['v_add_u32 v%d, 0x10000, v%d' % (vRX2[0], vRC[0]), 'v_add_u32 v%d, 0x10000, v%d' % (vRX2[1], vRC[1])]
        late = ['v_accvgpr_write_b32 a%d, 0' % i for i in range(128)]
        late += ['v_mov_b32 v%d, 0' % (vLs + i) for i in range(4)] + ['v_mov_b32 v%d, 0' % (vTs + i) for i in range(4)]
        late += ['v_bfe_u32 v%d, v%d, 4, 4' % (vU, vL16), 'v_lshrrev_b32 v%d, 8, v%d' % (vU + 1, vL16),
                 'v_lshlrev_b32 v%d, 2, v%d' % (vU + 1, vU + 1), 'v_sub_u32 v%d, v%d, v%d' % (vU, vU, vU + 1),
                 'v_mov_b32 v%d, 0x%x' % (vU + 1, BIGN)]
        for r in range(4):
            late += ['v_cmp_gt_i32 vcc, %d, v%d' % (r, vU), 's_nop 1', 'v_cndmask_b32 v%d, 0, v%d, vcc' % (vB + r, vU + 1)]
        late += ['v_lshrrev_b32 v%d, 4, v%d' % (vU, vL16)]
        for i in range(9):
            late += ['v_add_u32 v%d, %d, v%d' % (vU + 1, 64 * i, vU), 'v_mul_u32_u24 v%d, 0xe39, v%d' % (vU + 2, vU + 1),
                     'v_lshrrev_b32 v%d, 16, v%d' % (vU + 2, vU + 2), 'v_mul_u32_u24 v%d, 0x360, v%d' % (vU + 2, vU + 2),
                     'v_lshl_add_u32 v%d, v%d, 4, v%d' % (vWo[i], vU + 1, vU + 2)]
            if i & 3: late += ['v_subrev_u32 v%d, %d, v%d' % (vWo[i], (i & 3) * 1024, vWo[i])]
        late += ['v_lshrrev_b32 v%d, 2, v%d' % (vU + 1, vU), 'v_mul_u32_u24 v%d, 0x120, v%d' % (vU + 1, vU + 1),
                 'v_and_b32 v%d, 3, v%d' % (vU + 2, vU), 'v_lshl_add_u32 v%d, v%d, 3, v%d' % (vRO[1], vU + 2, vU + 1),
                 'v_add_u32 v%d, %d, v%d' % (vRO[0], WK0, vRO[1]), 'v_add_u32 v%d, %d, v%d' % (vRO[2], 7 * 9216, vRO[1])]
        carry = []
        for k in range(18):
            s = k >> 1; last = k == 17
            order = [(i, qt) for i in range(8) for qt in range(4)]
            if last: order = [(i, qt) for qt in range(4) for i in range(8)]
            ms = [mfma(qacc(i, qt), self.qwfrag(k, i), self.qxfrag(k, qt), '0' if k == 0 else qacc(i, qt)) for (i, qt) in order]
            gaps = [[] for _ in range(32)]
            pos = 0
            if k & 1:
                w = 'WAIT q%d:0 lgkm0' % (s + 1) if s < 8 else 'WAIT kv:1 lgkm0'
                if k == 5: w = 's_waitcnt vmcnt(12) lgkmcnt(0)'
                gaps[0] += [w, 's_barrier']
                pos = 1
                if k == 5: gaps[1] += self.publish(F_KV, True) + self.publish(F_FF, False); pos = 2
                if s <= 5: carry = self.merge_m0(self.q_dma(s + 3)) + [self.kv_dma_adv()[:2], self.kv_dma_adv()[2:]]
                elif s == 6: carry = self.at_dma(True, False, XC)
                elif s == 7: carry = self.at_dma(True, True, XA)
                else: carry = self.at_dma(True, True, XB)
            if k == 8:
                fa = self.flag_addr(vPoll, F_KV, ['s_and_b32 s94, s2, 31'], 8, 32)
                gaps[28] += fa[:5]; gaps[29] += fa[5:]
                self.kvpoll = self.poll(vPoll, vT, 8)
                gaps[30] = self.kvpoll[0] + gaps[30]
            if k == 12:
                gaps[26] += self.kvpoll[1] + self.acquire()
                gaps[28] += ['s_lshl_b32 s%d, s%d, 19' % (sK, sH), 's_add_u32 s%d, s%d, s%d' % (sK, sK, sMW)]
                gaps[29] += ['s_add_u32 s%d, s%d, %d' % (sV, sK, VBUF - KBUF), 's_mov_b32 s%d, %d' % (sR, XC)]
                gaps[30] += ['v_add_u32 v%d, %d, v%d' % (vRd, XC, vL16)]
            rd = self.q_reads(k + 1) if not last else [self.k_read(n, n >> 2, n & 3) for n in range(8)]
            g = pos; nd = 7 if (k & 1) else 99
            while rd or (carry and nd):
                if carry and nd and (g % 4 == 1 or not rd):
                    gaps[g] = carry.pop(0) + gaps[g]; nd -= 1
                else:
                    gaps[g].insert(0, rd.pop(0))
                g += 1
            assert g <= 30, (k, g)
            if last:
                self.q_carry = carry
            src = fill if k < 2 else (late if k >= 3 else [])
            if not last:
                for g in range(1, 32):
                    if src and not any(t.startswith('buffer') or t.startswith('s_c') or t.startswith('v_') for t in gaps[g]):
                        t = src.pop(0)
                        gaps[g].append(t)
                        if t.startswith('v_cmp'):
                            gaps[g] += [src.pop(0), src.pop(0)]
            else:
                assert not late and not fill
                ep = []
                self.q_ep = []
                for qt in range(4):
                    for ds in range(4):
                        x, y = qacc(2 * ds, qt)[1], qacc(2 * ds + 1, qt)[1]
                        ops = ['v_mul_f32 v%d, 0x%x, v%d' % (r, QSCALE, r) for r in list(range(x, x + 4)) + list(range(y, y + 4))]
                        ops += ['v_cvt_pk_bf16_f32 v%d, v%d, v%d' % (x, x, x + 1), 'v_cvt_pk_bf16_f32 v%d, v%d, v%d' % (x + 1, x + 2, x + 3),
                                'v_cvt_pk_bf16_f32 v%d, v%d, v%d' % (x + 2, y, y + 1), 'v_cvt_pk_bf16_f32 v%d, v%d, v%d' % (x + 3, y + 2, y + 3)]
                        ep += [(qt * 8 + 2 * ds + 1, t) for t in ops]
                for g in range(32):
                    n = 3
                    while n and ep and ep[0][0] + 4 <= g:
                        gaps[g].append(ep.pop(0)[1]); n -= 1
                self.q_ep = [t for (_, t) in ep]
            emit_gaps(b, ms, gaps)
        return b

    def k_read(self, n, kt, ds): return 'ds_read_b128 %s, v%d offset:%d' % (rr(fifo(n)), vRd, (kt * 4 + ds) * 1024)
    def v_read(self, n, ks, dt): return 'ds_read_b128 %s, v%d offset:%d' % (rr(fifo(n)), vRd, 16384 + (ks * 8 + dt) * 1024)

    def qk_step(self, mode, par, half, n0, masked, first=False):
        ms, fr, inits = [], [], []
        if mode == 'd':
            tiles = [(kt, qt) for kt in range(2) for qt in (2, 3, 0, 1)]
            if first: tiles = [(kt, qt) for qt in range(4) for kt in range(2)]
            nk = 2
        else:
            tiles = [(kt, qt) for kt in range(4) for qt in (2, 3)]; nk = 4
        use = {}
        for (kt, qt) in tiles:
            S = stile(mode, par, kt, qt)
            m = masked and (qt < 2 if mode == 'd' else True)
            if m:
                o = (qt & 1) - kt + 3
                ops = ['v_mov_b32 v%d, s%d' % (vM, sNone[o])] if first else ['v_add_f32 v%d, s%d, v%d' % (vM, sNone[o], negm(qt)[1])]
                ops += ['v_fma_f32 v%d, v%d, s%d, v%d' % (S[1] + r, vB + r, sTri[o], vM) for r in range(4)]
                inits.append((len(ms), ops))
            for ds in range(4):
                c = S if (ds or m) else ('0' if first else negm(qt))
                use.setdefault((kt, ds), []).append(len(ms))
                ms.append(mfma(S, fifo(n0 + kt * 4 + ds), qfrag(qt, ds), c))
        for kt in range(nk):
            for ds in range(4):
                fr.append((self.k_read(n0 + kt * 4 + ds, (2 * half if mode == 'd' else 0) + kt, ds), use[(kt, ds)][0], use[(kt, ds)][-1]))
        return ms, fr, inits
    def pv_step(self, mode, par, half, n0):
        ms, fr = [], []
        for dt in range(8):
            if mode == 'd':
                fr.append((self.v_read(n0 + dt, half, dt), len(ms), len(ms) + 3))
                for qt in range(4):
                    ms.append(mfma(oacc(dt, qt), fifo(n0 + dt), pfrag('d', par, qt, 0), oacc(dt, qt)))
            else:
                for ks in range(2): fr.append((self.v_read(n0 + 2 * dt + ks, ks, dt), len(ms) + ks, len(ms) + 2 + ks))
                for qt in (2, 3):
                    for ks in range(2):
                        ms.append(mfma(oacc(dt, qt), fifo(n0 + 2 * dt + ks), pfrag('s', par, qt, ks), oacc(dt, qt)))
        return ms, fr, []
    def pairs(self, mode, par):
        out = []
        for qt in (range(4) if mode == 'd' else (2, 3)):
            first = True
            for ks in range(1 if mode == 'd' else 2):
                P = pfrag(mode, par, qt, ks)[1]
                for h in range(2):
                    S = stile(mode, par, 2 * ks + h, qt)[1]
                    for e in range(2):
                        out.append((qt, first, S + 2 * e, P + 2 * h + e)); first = False
        return out
    def softmax(self, mode, par):
        g = [[] for _ in range(64)]
        for p, (qt, first, S, P) in enumerate(self.pairs(mode, par)):
            g[4 * p].append('v_exp_f32 v%d, v%d' % (vE[0], S))
            g[4 * p + 1].append('v_exp_f32 v%d, v%d' % (vE[1], S + 1))
            if first:
                g[4 * p + 2] += ['v_add_f32 v%d, v%d, v%d' % (vLs + qt, vLs + qt, vTs + qt), 'v_add_f32 v%d, v%d, v%d' % (vTs + qt, vE[0], vE[1])]
            else:
                g[4 * p + 2] += ['v_add_f32 v%d, v%d, v%d' % (vTs + qt, vTs + qt, vE[0]), 'v_add_f32 v%d, v%d, v%d' % (vTs + qt, vTs + qt, vE[1])]
            g[4 * p + 3].append('v_cvt_pk_bf16_f32 v%d, v%d, v%d' % (P, vE[0], vE[1]))
        return g
    def check(self, g, mode, par, nxt):
        if mode == 'd':
            g[51].append('v_max3_f32 v%d, v%d, v%d, v%d' % (vM2, vTs, vTs + 1, vTs + 2))
            head = ['v_max_f32 v%d, v%d, v%d' % (vM2, vM2, vTs + 3)]
        else:
            head = ['v_max_f32 v%d, v%d, v%d' % (vM2, vTs + 2, vTs + 3)]
        back = self.lab('back'); tr = self.lab('tr')
        t = self.blk(tr, tail=True)
        t('%s:\ns_call_b64 s[%d:%d], %s\ns_branch %s' % (tr, sRet, sRet + 1, self.rare(mode, par, nxt), back))
        g[63] = head + ['v_cmp_lt_f32 vcc, 0x%x, v%d' % (THR, vM2)] + g[63] + ['s_cbranch_vccnz %s' % tr, back + ':']
    def rowmax(self, b, regs, dst, t):
        b('v_max3_f32 v%d, v%d, v%d, v%d' % (dst, regs[0], regs[1], regs[2]))
        regs = regs[3:]
        while len(regs) >= 2:
            b('v_max3_f32 v%d, v%d, v%d, v%d' % (dst, dst, regs[0], regs[1])); regs = regs[2:]
        if regs: b('v_max_f32 v%d, v%d, v%d' % (dst, dst, regs[0]))
        self.xlane(b, 'v_max_f32', dst, t)
    def xlane(self, b, op, dst, t):
        for sw in ('v_permlane32_swap_b32', 'v_permlane16_swap_b32'):
            b('v_mov_b32 v%d, v%d\ns_nop 1\n%s v%d, v%d\n%s v%d, v%d, v%d' % (t, dst, sw, dst, t, op, dst, dst, t))
    def sregs(self, mode, par, qt):
        return [stile(mode, par, kt, qt)[1] + r for kt in range(2 if mode == 'd' else 4) for r in range(4)]
    def rare(self, mode, par, nxt):
        key = 'L_rare_%s%d%s' % (mode, par, nxt or 'n')
        if key in self.rares: return key
        self.rares[key] = b = self.blk(key, tail=True)
        b(key + ':\ns_nop 7\ns_nop 1')
        d, f, t = vU, vU + 1, vU + 2
        for qt in (range(4) if mode == 'd' else (2, 3)):
            sr = self.sregs(mode, par, qt)
            self.rowmax(b, sr, d, t)
            b('v_max_f32 v%d, 0, v%d\nv_sub_f32 v%d, 0, v%d\nv_exp_f32 v%d, v%d' % (d, d, f, d, f, f))
            for r in range(4): b('v_sub_f32 v%d, v%d, v%d' % (negm(qt)[1] + r, negm(qt)[1] + r, d))
            b('v_mul_f32 v%d, v%d, v%d' % (vLs + qt, vLs + qt, f))
            for dt in range(8):
                o = oacc(dt, qt)[1]
                for r in range(4): b('v_accvgpr_read_b32 v%d, a%d' % (t + r, o + r))
                for r in range(4): b('v_mul_f32 v%d, v%d, v%d' % (t + r, t + r, f))
                for r in range(4): b('v_accvgpr_write_b32 a%d, v%d' % (o + r, t + r))
            for r in sr: b('v_sub_f32 v%d, v%d, v%d' % (r, r, d))
            if nxt and (nxt == 'd' or qt >= 2):
                for r in self.sregs(nxt, par ^ 1, qt): b('v_sub_f32 v%d, v%d, v%d' % (r, r, d))
        for (qt, first, S, P) in self.pairs(mode, par):
            b('v_exp_f32 v%d, v%d\nv_exp_f32 v%d, v%d\ns_nop 0' % (vE[0], S, vE[1], S + 1))
            if first: b('v_add_f32 v%d, v%d, v%d' % (vTs + qt, vE[0], vE[1]))
            else: b('v_add_f32 v%d, v%d, v%d\nv_add_f32 v%d, v%d, v%d' % (vTs + qt, vTs + qt, vE[0], vTs + qt, vTs + qt, vE[1]))
            b('v_cvt_pk_bf16_f32 v%d, v%d, v%d' % (P, vE[0], vE[1]))
        b('s_nop 1\ns_setpc_b64 s[%d:%d]' % (sRet, sRet + 1))
        return key
    def mask_scalars(self, offs):
        out = []
        for o in offs:
            out += [['s_cmp_eq_i32 s%d, %d' % (sD, -o), 's_cselect_b32 s%d, 1.0, 0' % sTri[o + 3]],
                    ['s_cmp_lt_i32 s%d, %d' % (sD, -o), 's_cselect_b32 s%d, 0x%x, 0' % (sNone[o + 3], BIGN)]]
        return out

    def at_block(self, name, steps, sm, nxt_reads, bar, dma, extra=None, pre=None, nl_in=6, wait='WAIT kv:1 lgkm0', post_bar=None):
        b = self.blk(name)
        ms, fr, inits = [], [], []
        for (m, f, ini) in steps:
            fr += [(t, u0 + len(ms), u1 + len(ms)) for (t, u0, u1) in f]
            inits += [(u + len(ms), ops) for (u, ops) in ini]
            ms += m
        G = len(ms)
        gaps = [list(x) for x in sm]
        assert len(gaps) == G
        front = [[] for _ in range(G)]
        own = fr[nl_in:]
        def place(slots):
            res = []; lim = (bar - 4) if bar is not None else G
            for idx in range(len(own) - 1, -1, -1):
                t, u0, u1 = own[idx]
                dl = min(u0 - 6, lim)
                n = idx + nl_in
                free = fr[n - 16][2] if n >= 16 else -1
                c = [x for x in slots if x <= dl and x >= max(free, 0)]
                if not c: return None
                res.append((c[-1], t)); lim = c[-1] - 1
            return res
        res = None
        for slots in ([g for g in range(G) if g % 4 == 3], [g for g in range(G) if g % 2 == 1], list(range(G))):
            res = place(slots)
            if res: break
        assert res is not None or not own, name
        for (g, t) in (res or []): front[g].append(t)
        if bar is not None:
            sc, vc = self.at_rotate()
            for i, t in enumerate(sc[:2]): front[bar - 3 + i].insert(0, t)
            front[bar - 1] = sc[2:] + front[bar - 1]
            gaps[bar - 1] = gaps[bar - 1] + vc
            front[bar] = [wait, 's_barrier'] + (post_bar or []) + front[bar]
            step = (G - bar) // len(nxt_reads)
            for i, t in enumerate(nxt_reads):
                n = len(fr) + i
                g = bar + step * i
                assert n < 16 or g >= fr[n - 16][2], (name, n)
                front[g].append(t)
        lim = bar if bar is not None else G
        cand = [g for g in range(lim) if not any(not x.startswith('s_') for x in front[g])]
        if len(cand) >= 2 * len(dma): cand = cand[::2]
        assert len(cand) >= len(dma), name
        for g, grp in zip(cand, dma): front[g] += grp
        prel = list(pre or [])
        for (u, ops) in inits:
            if u < 4: prel += ops
            else:
                gaps[u - 4] += ops[:2]; gaps[u - 3] += ops[2:3]; gaps[u - 2] += ops[3:]
        if prel and inits and inits[0][0] < 4: prel.append('s_nop 1')
        for (g, ops) in (extra or []):
            if ops[0].startswith('s_') and not ops[0].startswith('s_cbranch'): front[g] = ops + front[g]
            else: gaps[g] = gaps[g] + ops
        b(name + ':')
        emit_gaps(b, ms, [front[g] + gaps[g] for g in range(G)], pre=prel)
        return b

    def finalize(self, b, qts, blk_expr, tag, mid=()):
        for t in blk_expr: b(t)
        b('s_lshl_b32 s95, s%d, 4\ns_add_u32 s94, s94, s95\ns_lshl_b32 s94, s94, 15\ns_add_u32 s94, s94, s%d' % (sH, sMC))
        b('s_add_u32 s%d, s94, %d\ns_add_u32 s%d, s94, %d' % (sT0, CTXB, sT1, CTXB + 4096))
        for qt in qts:
            L = vLs + qt
            b('v_add_f32 v%d, v%d, v%d' % (L, L, vTs + qt))
            self.xlane(b, 'v_add_f32', L, vU)
            b('v_rcp_f32 v%d, v%d' % (L, L))
        for t in mid: b(t)
        for qi, qt in enumerate(qts):
            L = vLs + qt
            for ks in range(4):
                t = vU + 8 * (ks & 1)
                o = oacc(2 * ks, qt)[1]
                for r in range(8): b('v_accvgpr_read_b32 v%d, a%d' % (t + r, o + r))
                for r in range(8): b('v_mul_f32 v%d, v%d, v%d' % (t + r, t + r, L))
                q = qfrag(qt, ks)[1]
                for r in range(4): b('v_cvt_pk_bf16_f32 v%d, v%d, v%d' % (q + r, t + 2 * r, t + 2 * r + 1))
                b('buffer_store_dwordx4 %s, v%d, %s, s%d offen offset:%d @%s' % (v4(q), vL16, srd(R_WS), sT0 + qi, ks * 1024, tag))

    def attention(self):
        self.rares = {}
        E = lambda n: [[] for _ in range(n)]
        vnext_d = [self.v_read(n, 0, n) for n in range(6)]
        knext_s = [self.k_read(n, n >> 2, n & 3) for n in range(6)]
        p0 = self.blk('pro0')
        for t in self.stamp(3): p0(t)
        p0('s_lshl_b32 s%d, s%d, 3\ns_lshl_b32 s94, s%d, 1\ns_add_u32 s%d, s%d, s94' % (sD, sJ, sW, sD, sD))
        for g in self.mask_scalars((-1, 0, 1)):
            for t in g: p0(t)
        ms, fr, inits = self.qk_step('d', 0, 0, 0, True, first=True)
        ep = list(self.q_ep)
        lim = len(ep) - 2 * 48 if len(ep) > 2 * 48 else 0
        p0('s_nop 4')
        for t in ep[:lim]: p0(t)
        ep = ep[lim:]
        gaps = E(32)
        carry = list(self.q_carry)
        later = [self.k_read(8 + n, 2 + (n >> 2), n & 3) for n in range(8)]
        pre = inits[0][1] + ['s_nop 1']
        for (u, ops) in inits[1:]: gaps[u - 3] += ops
        for g in range(32):
            if g < 12:
                for _ in range(4):
                    if ep: gaps[g].append(ep.pop(0))
            elif g % 2 == 0 and ep:
                pass
        for g in range(12, 22):
            for _ in range(5):
                if ep: gaps[g].append(ep.pop(0))
        assert not ep
        for g in range(22, 30): gaps[g].insert(0, later.pop(0))
        g = 0
        for grp in carry:
            gaps[g] = grp + gaps[g]; g += 2
        p0.autowait()
        emit_gaps(p0, ms, gaps, pre=pre)
        p0('s_nop 3')
        for qt in range(4):
            sr = self.sregs('d', 0, qt)
            self.rowmax(p0, sr, vU, vU + 1)
            for r in range(4): p0('v_sub_f32 v%d, 0, v%d' % (negm(qt)[1] + r, vU))
            for r in sr: p0('v_sub_f32 v%d, v%d, v%d' % (r, r, vU))
        p0('s_sub_u32 s%d, s%d, 2' % (sD, sD))
        for g in self.mask_scalars((-1, 0, 1)):
            for t in g: p0(t)
        sm0 = self.softmax('d', 0)
        for g in range(32):
            for t in sm0[g]: p0(t)
            if g % 4 == 1: p0('s_nop 0')
        p0.autowait()
        s1 = self.qk_step('d', 1, 1, 8, True)
        p1 = self.at_block('L_pro1', [s1], sm0[32:], vnext_d, 8, [], nl_in=8,
                           extra=[(20, ['s_lshl_b32 s%d, s%d, 1' % (sCnt, sJ)]), (21, ['s_sub_u32 s%d, s%d, 2' % (sD, sD)])],
                           wait='WAIT kv:1 lgkm0')
        p1('s_cmp_eq_u32 s%d, 0\ns_cbranch_scc1 L_dd_one' % sJ)
        p1('s_sub_u32 s%d, s%d, 1' % (sCnt, sCnt))
        def dual(name, masked):
            w1, w0 = self.softmax('d', 1), self.softmax('d', 0)
            self.check(w1, 'd', 1, 'd'); self.check(w0, 'd', 0, 'd')
            steps = [self.pv_step('d', 0, 0, 0), self.qk_step('d', 0, 0, 8, masked), self.pv_step('d', 1, 1, 16), self.qk_step('d', 1, 1, 24, masked)]
            extra = []
            if masked:
                for base in (8, 72):
                    for i, g in enumerate(self.mask_scalars((-1, 0, 1))): extra.append((base + 2 * i, g))
                    extra.append((base + 14, ['s_sub_u32 s%d, s%d, 2' % (sD, sD)]))
            else:
                extra.append((100, ['s_sub_u32 s%d, s%d, 4' % (sD, sD)]))
            extra.append((120, ['s_sub_u32 s%d, s%d, 1' % (sCnt, sCnt)]))
            return self.at_block(name, steps, w1 + w0, vnext_d, 104, self.at_dma(), extra=extra)
        dp = dual('L_dp', False)
        dp('s_cmp_lg_u32 s%d, 0\ns_cbranch_scc1 L_dp' % sCnt)
        dpx = self.blk('dpx'); dpx('s_mov_b32 s%d, 1\nL_dd_one:\ns_add_u32 s%d, s%d, 1' % (sCnt, sCnt, sCnt))
        dd = dual('L_dd', True)
        dd('s_cmp_lg_u32 s%d, 0\ns_cbranch_scc1 L_dd' % sCnt)
        w1, w0s = self.softmax('d', 1), self.softmax('s', 0)
        self.check(w1, 'd', 1, 's')
        steps = [self.pv_step('d', 0, 0, 0), self.qk_step('s', 0, 0, 8, True), self.pv_step('d', 1, 1, 24)]
        extra = [(2, ['s_lshl_b32 s94, s%d, 4' % sJ, 's_sub_u32 s%d, 112, s94' % sD]), (4, ['s_lshl_b32 s94, s%d, 1' % sW, 's_add_u32 s%d, s%d, s94' % (sD, sD)])]
        for i, g in enumerate(self.mask_scalars(range(-3, 2))): extra.append((6 + 2 * i, g))
        extra.append((70, ['s_sub_u32 s%d, s%d, 4' % (sD, sD)]))
        trn = self.at_block('L_tr', steps, w1 + w0s[:32], knext_s, 84, self.at_dma(), extra=extra)
        fa = self.blk('finA')
        for t in self.stamp(4): fa(t)
        fa('s_nop 3')
        self.finalize(fa, (0, 1), ['s_mov_b32 s94, s%d' % sJ], 'ca')
        for t in self.o_scalars(): fa(t)
        fa('s_lshl_b32 s94, s%d, 1\ns_sub_u32 s%d, 13, s94' % (sJ, sCnt))
        fa('s_cmp_eq_u32 s%d, 7\ns_cbranch_scc1 L_s3' % sJ)
        def single(name, par, masked, dma, nxt, nxt_mode='s', extra=(), **kw):
            wa, wb = self.softmax('s', par), self.softmax('s', par ^ 1)
            self.check(wa, 's', par, 's')
            steps = [self.qk_step('s', par ^ 1, 0, 0, masked), self.pv_step('s', par, 0, 16)]
            pre = []
            if masked:
                for g in self.mask_scalars(range(-3, 2)): pre += g
            extra = list(extra) + [(40, ['s_sub_u32 s%d, s%d, 4' % (sD, sD)])]
            return self.at_block(name, steps, wa[32:] + wb[:32], nxt, 52, dma, extra=extra, pre=pre, **kw)
        sp0 = single('L_sp', 0, False, self.at_dma(), knext_s)
        sp1 = single('L_sp1', 1, False, self.at_dma(), knext_s, extra=[(44, ['s_sub_u32 s%d, s%d, 1' % (sCnt, sCnt)])])
        sp1('s_cmp_lg_u32 s%d, 0\ns_cbranch_scc1 L_sp' % sCnt)
        s1b = single('L_s1', 0, False, self.at_dma(), knext_s)
        s2b = single('L_s2', 1, True, self.at_dma(False, True), knext_s)
        vnext_s = [self.v_read(n, n & 1, n >> 1) for n in range(6)]
        s3b = single('L_s3', 0, True, self.wo_dma(0, 'wo0') + self.wo_dma(1, 'wo0'), vnext_s, wait='WAIT kv:0 ca:0 lgkm0', post_bar=self.publish(F_CA, True))
        fin = self.blk('atfin')
        wl = self.softmax('s', 1)
        self.check(wl, 's', 1, None)
        for g in range(32, 64):
            for t in wl[g]: fin(t)
            if g % 4 == 1: fin('s_nop 0')
        fin.autowait()
        lp = self.at_block('L_last', [self.pv_step('s', 1, 0, 0)], E(32), [], None, [])
        fb = self.blk('finB')
        for t in self.stamp(5): fb(t)
        fb('WAIT wo0:0 lgkm0\ns_barrier')
        fa_ = self.flag_addr(vPoll, F_CA, ['s_and_b32 s94, s2, 0xe7'], 4, 8)
        for t in fa_: fb(t)
        ld, chk = self.poll(vPoll, vT, 4)
        for t in ld: fb(t)
        side = [t for g in self.wo_dma(2, 'wo1') + self.wo_dma(3, 'wo1') for t in g]
        for t in side:
            fb(t)
            if t.startswith('s_add_u32 m0'): fb('s_nop 0')
        lab = self.lab('w3'); back = self.lab('back')
        w3 = self.blk(lab, tail=True); w3(lab + ':')
        for g in self.wo_dma(4, 'wo1'):
            for t in g:
                w3(t)
                if t.startswith('s_add_u32 m0') or t.startswith('s_mov_b32 m0'): w3('s_nop 0')
        w3('s_branch ' + back)
        fb('s_cmp_eq_u32 s%d, 3\ns_cbranch_scc1 %s\n%s:' % (sW, lab, back))
        self.finalize(fb, (2, 3), ['s_sub_u32 s94, 15, s%d' % sJ], 'cb', mid=['s_waitcnt vmcnt(18)'] + chk + self.acquire() + self.pctx_loads(0))
        for t in self.stamp(6): fb(t)
        head = [p0, p1]; tail = [s3b, fin, lp, fb]
        return [head + [dp, dp, dp, dpx, dd, dd, trn, fa, sp0, sp1, sp0, sp1, s1b, s2b] + tail,
                head + [dp, dpx, dd, dd, trn, fa, sp0, sp1, s1b, s2b] + tail,
                head + [dpx, dd, trn, fa, sp0, sp1, sp0, sp1, s1b, s2b] + tail,
                head + [dp, dp, dpx, dd, dd, trn, fa] + tail]

    def o_scalars(self):
        out = []
        for n in range(4):
            out += ['s_add_u32 s94, s%d, %d' % (sY, n), 's_and_b32 s94, s94, 3', 's_lshl_b32 s95, s%d, 2' % sX, 's_add_u32 s94, s94, s95']
            if n:
                out += ['s_lshl_b32 s95, s94, 4', 's_add_u32 s95, s95, s%d' % sJ, 's_lshl_b32 s95, s95, 15', 's_add_u32 s95, s95, s%d' % sMC,
                        's_add_u32 s%d, s95, %d' % (sPc[n - 1], CTXB)]
            out += ['s_lshl_b32 s94, s94, 2', 's_add_u32 s94, s94, s%d' % sW, 's_mul_i32 s94, s94, %d' % (32 * 1152),
                    's_mul_i32 s95, s%d, 288' % sY, 's_add_u32 s%d, s94, s95' % sWoS[n]]
        out += ['s_mul_i32 s%d, s%d, 9216' % (sT2, sW), 's_cmp_eq_u32 s%d, 3' % sW, 's_cselect_b32 s%d, %d, s%d' % (sT3, OOB, sWoS[1])]
        return out
    def wo_dma(self, n, tag):
        loc = [WK0, WK0 + 4 * 9216, 9216, 5 * 9216, 0][n]
        so_ = [sWoS[0], sT3, sWoS[2], sWoS[3], sWoS[1]][n]
        out = []
        for i in range(9):
            if i % 4 == 0:
                out.append(['s_add_u32 m0, s%d, %d' % (sT2, loc + (i >> 2) * 4096)] if n < 4 else ['s_mov_b32 m0, %d' % ((i >> 2) * 4096)])
            out.append(['buffer_load_dwordx4 v%d, %s, s%d offen offset:%d lds @%s' % (vWo[i], srd(R_WO), so_, (i & 3) * 1024, tag)])
        return self.merge_m0(out)
    def pctx_loads(self, blk):
        out = []
        for n in range(1, 4):
            if blk:
                out += ['s_lshl_b32 s94, s%d, 1' % sJ, 's_sub_u32 s94, 15, s94', 's_lshl_b32 s94, s94, 15', 's_add_u32 s%d, s%d, s94' % (sPc[n - 1], sPc[n - 1])]
            out.append('s_add_u32 s95, s%d, 4096' % sPc[n - 1])
            for ks in range(4):
                for qt in range(2):
                    out.append('buffer_load_dwordx4 %s, v%d, %s, s%d offen offset:%d sc1' % (rr(pctx(blk, n, qt, ks)), vL16, srd(R_WS), 95 if qt else sPc[n - 1], ks * 1024))
        return out
    def wo_reads(self, f, c, u):
        base, off = (vRO[0], 9216 * c) if c < 7 else ((vRO[1], 9216 * (c - 7)) if c < 14 else (vRO[2], 9216 * (c - 14)))
        r = fifo(f)
        return ['ds_read_b64_tr_b16 %s, v%d offset:%d' % (rr((r[0], r[1] + 2 * hf), 2), base, off + hf * 4608 + 32 * u) for hf in range(2)]
    def part_store(self, acc, u, tag):
        x, y = acc(u, 0)[1], acc(u, 1)[1]
        cv = ['v_cvt_pk_bf16_f32 v%d, v%d, v%d' % (x, x, x + 1), 'v_cvt_pk_bf16_f32 v%d, v%d, v%d' % (x + 1, x + 2, x + 3),
              'v_cvt_pk_bf16_f32 v%d, v%d, v%d' % (x + 2, y, y + 1), 'v_cvt_pk_bf16_f32 v%d, v%d, v%d' % (x + 3, y + 2, y + 3)]
        st = ['buffer_store_dwordx4 %s, v%d, %s, s%d offen sc1 @%s' % (v4(x), vL16, srd(R_WS), sPart, tag), 's_add_u32 s%d, s%d, 8192' % (sPart, sPart)]
        return cv, st
    def part_base(self, blk, dst, wave, extra):
        out = ['s_mov_b32 s94, s%d' % sJ] if blk == 0 else ['s_sub_u32 s94, 15, s%d' % sJ]
        out += ['s_lshl_b32 s94, s94, 2', 's_add_u32 s94, s94, s%d' % sY, 's_lshl_b32 s94, s94, 2', 's_add_u32 s94, s94, s%d' % wave,
                's_mul_i32 s94, s94, %d' % (72 * 1024), 's_add_u32 s94, s94, %d' % PART, 's_add_u32 s%d, s94, s%d' % (dst, extra)]
        return out

    def o_phase(self):
        b = self.blk('oproj')
        LA = 10
        seq = [(0, c, u) for c in range(16) for u in range(9)] + [(1, c, u) for u in range(9) for c in range(16)]
        ms = []
        for f, (blk, c, u) in enumerate(seq):
            for qt in range(2):
                d = lacc(u, qt) if blk == 0 else hacc(u, qt)
                ms.append(mfma(d, fifo(f), pctx(blk, c >> 2, qt, c & 3), '0' if c == 0 else d))
        G = len(ms)
        front = [[] for _ in range(G)]; gaps = [[] for _ in range(G)]
        pre = []
        for f, (blk, c, u) in enumerate(seq):
            for hf, t in enumerate(self.wo_reads(f, c, u)):
                g = 2 * f - LA + hf
                (pre if g < 0 else front[g]).append(t)
        B2 = 2 * 63 - LA
        front[B2] = ['WAIT wo1:0 cb:0', 's_barrier'] + front[B2]
        gaps[B2 + 1] += self.publish(F_CB, True)
        fa = self.flag_addr(vPoll, F_CB, ['s_and_b32 s94, s2, 0xe7'], 4, 8)
        gaps[150] += fa[:5]; gaps[152] += fa[5:]
        ld, chk = self.poll(vPoll, vT, 4)
        gaps[160] += ld
        gaps[196] += chk + self.acquire()
        g = 198
        for t in self.pctx_loads(1):
            gaps[g].append(t)
            if t.startswith('buffer'): g += 2
        pb = ['s_lshl_b32 s95, s%d, 10' % sX] + self.part_base(0, sPart, sW, 95)
        for i, t in enumerate(pb): gaps[250 + i].insert(0, t)
        for u in range(9):
            cv, st = self.part_store(lacc, u, 'pl')
            g = 270 + 2 * u + 1 + 4 + u
            gaps[g] += cv[:2]; gaps[g + 1] += cv[2:]; gaps[g + 2] += st
        pb = ['s_lshl_b32 s95, s%d, 10' % sX] + self.part_base(1, sPart, sW, 95)
        for i, t in enumerate(pb): gaps[306 + i].insert(0, t)
        spill = []
        for u in range(9):
            cv, st = self.part_store(hacc, u, 'ph')
            g = 288 + 32 * u + 31 + 5
            if g + 2 < G:
                gaps[g] += cv[:2]; gaps[g + 1] += cv[2:]; gaps[g + 2] += st
            else: spill = cv + st
        B3 = 400
        front[B3] = ['WAIT pl:0', 's_barrier'] + front[B3]
        gaps[B3 + 1] += self.publish(F_PL, False)
        g = 420
        for grp in self.final_prefetch():
            gaps[g] += grp; g += 2
        assert g < 540
        fa = self.flag_addr(vPoll, F_PL, ['s_and_b32 s94, s2, 0xf8'], 8, 1)
        gaps[544] += fa[:5]; gaps[546] += fa[5:]
        ld, chk = self.poll(vPoll, vT, 8)
        gaps[550] += ld
        for t in pre: b(t)
        b.autowait()
        emit_gaps(b, ms, [front[g] + gaps[g] for g in range(G)])
        b('s_nop 6')
        for t in spill: b(t)
        for t in self.stamp(7): b(t)
        b.autowait()
        for t in chk: b(t)
        self.final_loads(b, 0)
        b('s_waitcnt vmcnt(8)\ns_barrier')
        for t in self.publish(F_PH, False): b(t)
        b('v_add_u32 v%d, 0x4000, v%d' % (vPoll, vPoll))
        b('s_waitcnt vmcnt(1)')
        self.final_combine(b, 0)
        for t in self.stamp(8): b(t)
        ld, chk = self.poll(vPoll, vT, 8)
        for t in ld: b(t)
        b('s_waitcnt vmcnt(0)')
        for t in chk: b(t)
        for t in self.stamp(9): b(t)
        self.final_loads(b, 1)
        b('s_waitcnt vmcnt(0)')
        self.final_combine(b, 1)
        return b

    def item_scalars(self, blk, rnd):
        out = ['s_and_b32 s95, s%d, 1' % sX, 's_mul_i32 s94, s95, %d' % (5 if blk == 0 else 4)]
        if rnd == 0: out += ['s_add_u32 s94, s94, s%d' % sW]
        else: out += ['s_add_u32 s94, s94, 4']
        return out
    def item_exists(self, blk):
        return ['s_and_b32 s95, s%d, 1' % sX, 's_xor_b32 s95, s95, %d' % blk, 's_or_b32 s95, s95, s%d' % sW, 's_cmp_eq_u32 s95, 0']
    vOA = [192, 193, 194, 195]
    vRw = [196, 197]
    def final_prefetch(self):
        out = []
        for blk in range(2):
            g = (['s_mov_b32 s94, s%d' % sJ] if blk == 0 else ['s_sub_u32 s94, 15, s%d' % sJ])
            g += ['s_lshl_b32 s94, s94, 2', 's_lshr_b32 s95, s%d, 1' % sX, 's_add_u32 s94, s94, s95', 's_lshl_b32 s94, s94, 5']
            out.append(g + ['v_bfe_u32 v%d, v%d, 4, 4' % (vU, vL16), 'v_add_u32 v%d, s94, v%d' % (self.vRw[blk], vU)])
            out.append(['v_lshlrev_b32 v%d, 2, v%d' % (vU, self.vRw[blk]), 'v_add_u32 v%d, %d, v%d' % (vU, GBUF, vU)])
            out.append(['buffer_load_dword v%d, v%d, %s, 0 offen sc1' % (2 * blk, vU, srd(R_WS))])
            out.append(['buffer_load_dword v%d, v%d, %s, 0 offen offset:64 sc1' % (2 * blk + 1, vU, srd(R_WS))])
            out.append(['v_mul_u32_u24 v%d, 0x480, v%d' % (vU, self.vRw[blk]), 'v_lshrrev_b32 v%d, 8, v%d' % (vU + 1, vL16)])
            out.append(['s_mul_i32 s%d, s%d, 288' % (sT0, sY), 'v_lshl_add_u32 v%d, v%d, 3, v%d' % (vU, vU + 1, vU), 'v_add_u32 v%d, s%d, v%d' % (vU, sT0, vU)])
            for rnd in range(2):
                it = 2 * blk + rnd
                g = self.item_scalars(blk, rnd) + ['s_lshl_b32 s94, s94, 5']
                if rnd: g += self.item_exists(blk) + ['s_cselect_b32 s94, s94, 0x40000000']
                out.append(g + ['v_add_u32 v%d, s94, v%d' % (self.vOA[it], vU)])
                out.append(['s_movk_i32 s%d, 0x4800' % sT1, 'buffer_load_dwordx2 v[%d:%d], v%d, %s, 0 offen' % (vX + 4 * it, vX + 4 * it + 1, self.vOA[it], srd(R_X))])
                out.append(['buffer_load_dwordx2 v[%d:%d], v%d, %s, s%d offen' % (vX + 4 * it + 2, vX + 4 * it + 3, self.vOA[it], srd(R_X), sT1)])
        return out
    def final_loads(self, b, blk):
        b('s_lshr_b32 s%d, s%d, 1' % (sT0, sX))
        skip = self.lab('skip')
        for rnd in range(2):
            if rnd:
                for t in self.item_exists(blk): b(t)
                b('s_cbranch_scc0 ' + skip)
            for t in self.item_scalars(blk, rnd): b(t)
            b('s_lshl_b32 s%d, s94, 13' % sT1)
            for t in self.part_base(blk, sT1, sT0, sT1): b(t)
            b('s_add_u32 s%d, s%d, 4096' % (sT2, sT1))
            for p in range(8):
                b('buffer_load_dwordx4 %s, v%d, %s, s%d offen offset:%d sc1' % (v4(QB + 32 * rnd + 4 * p), vL16, srd(R_WS), sT1 + (p >> 2), (p & 3) * 1024))
        b(skip + ':')
    def final_combine(self, b, blk):
        skip = self.lab('skip')
        A = 96
        b('v_mov_b32 v104, 0x3f80\nv_mov_b32 v105, 0x3f800000')
        for rnd in range(2):
            it = 2 * blk + rnd
            if rnd:
                for t in self.item_exists(blk): b(t)
                b('s_cbranch_scc0 ' + skip)
            P0 = QB + 32 * rnd
            for d in range(4):
                b('v_lshlrev_b32 v%d, 16, v%d\nv_and_b32 v%d, 0xffff0000, v%d' % (A + 2 * d, P0 + d, A + 2 * d + 1, P0 + d))
            for p in range(1, 8):
                for d in range(4):
                    b('v_dot2_f32_bf16 v%d, v%d, v104, v%d' % (A + 2 * d, P0 + 4 * p + d, A + 2 * d))
                    b('v_dot2_f32_bf16 v%d, v%d, v105, v%d' % (A + 2 * d + 1, P0 + 4 * p + d, A + 2 * d + 1))
            for d in range(4):
                b('v_lshlrev_b32 v%d, 16, v%d\nv_and_b32 v%d, 0xffff0000, v%d' % (108 + 2 * d, vX + 4 * it + d, 108 + 2 * d + 1, vX + 4 * it + d))
            self.ffn_add(b, blk, it)
            for qt in range(2):
                b('v_sub_f32 v106, 1.0, v%d' % (2 * blk + qt))
                for e in range(4):
                    r = 4 * qt + e
                    b('v_mul_f32 v%d, v106, v%d\nv_fmac_f32 v%d, v%d, v%d' % (108 + r, 108 + r, 108 + r, 2 * blk + qt, A + r))
            for d in range(4):
                b('v_cvt_pk_bf16_f32 v%d, v%d, v%d' % (116 + d, 108 + 2 * d, 108 + 2 * d + 1))
            b('s_movk_i32 s%d, 0x4800' % sT1)
            b('buffer_store_dwordx2 v[116:117], v%d, %s, 0 offen' % (self.vOA[it], srd(R_OUT)))
            b('buffer_store_dwordx2 v[118:119], v%d, %s, s%d offen' % (self.vOA[it], srd(R_OUT), sT1))
        b(skip + ':')
    def ffn_add(self, b, blk, it):
        lab = self.lab('ffa'); back = self.lab('back')
        b('v_readfirstlane_b32 s94, v%d\ns_sub_u32 s94, s%d, s94\ns_cmp_lt_u32 s94, 32\ns_cbranch_scc1 %s\n%s:' % (self.vRw[blk], sTok, lab, back))
        t = self.blk(lab, tail=True)
        t(lab + ':')
        t('v_lshlrev_b32 v120, 2, v%d\nv_add_u32 v120, %d, v120\ns_mov_b32 s%d, 0x4000' % (vL16, FLAG + F_FF * 16384, sSpin))
        t('%s_l:' % lab)
        t('s_movk_i32 s94, 0x1000\ns_movk_i32 s95, 0x2000')
        t('buffer_load_dword v121, v120, %s, 0 offen sc1\nbuffer_load_dword v122, v120, %s, s94 offen sc1\nbuffer_load_dword v123, v120, %s, s95 offen sc1' % (srd(R_WS), srd(R_WS), srd(R_WS)))
        t('s_waitcnt vmcnt(0)\nv_and_b32 v121, v121, v122\nv_cmp_ne_u32 vcc, 1, v121\ns_mov_b64 s[%d:%d], vcc\nv_cmp_ne_u32 vcc, 1, v123' % (sRet, sRet + 1))
        t('s_and_b32 s94, vcc_lo, 0xffff\ns_or_b32 s94, s94, s%d\ns_or_b32 s94, s94, s%d\ns_cbranch_scc0 %s_ok' % (sRet, sRet + 1, lab))
        t('s_sleep 4\ns_sub_u32 s%d, s%d, 1\ns_cmp_lg_u32 s%d, 0\ns_cbranch_scc1 %s_l' % (sSpin, sSpin, sSpin, lab))
        t('%s_ok:' % lab)
        t('v_mul_u32_u24 v120, 0x480, v%d\nv_sub_u32 v120, v%d, v120\nv_lshlrev_b32 v120, 1, v120\nv_add_u32 v120, %d, v120' % (self.vRw[blk], self.vOA[it], YACC))
        for rep in range(8):
            t('s_mov_b32 s94, %d\nbuffer_load_dwordx4 %s, v120, %s, s94 offen sc1' % (4096 * rep, v4(124 + 4 * rep), srd(R_WS)))
        t('s_waitcnt vmcnt(0)')
        for rep in range(1, 8):
            for e in range(4): t('v_add_f32 v%d, v%d, v%d' % (124 + e, 124 + e, 124 + 4 * rep + e))
        for qt in range(2):
            t('v_add_u32 v121, %d, v%d\nv_cmp_eq_u32 vcc, s%d, v121\nv_mov_b32 v122, s%d\ns_nop 0\nv_cndmask_b32 v122, 0, v122, vcc' % (16 * qt, self.vRw[blk], sTok, sRsel))
            for e in range(4): t('v_fmac_f32 v%d, v122, v%d' % (108 + 4 * qt + e, 124 + e))
        t('s_branch ' + back)

    def finish(self):
        b = self.blk('finish')
        if self.stamps:
            b('s_waitcnt vmcnt(0)')
            for t in self.stamp(13): b(t)
            b('s_lshl_b32 s94, s2, 8\ns_lshl_b32 s95, s%d, 6\ns_add_u32 s94, s94, s95\ns_add_u32 s94, s94, %d' % (sW, TIMB))
            b('v_mov_b32 v0, s94')
            for n, r in enumerate(self.STAMP):
                b('v_mov_b32 v1, s%d\nbuffer_store_dword v1, v0, %s, 0 offen offset:%d' % (r, srd(R_WS), 4 * n))
        b('s_waitcnt vmcnt(0) lgkmcnt(0)')
        b('L_end:\ns_endpgm')
        return b

    def build(self):
        setup = self.setup(); start = self.start()
        kv0 = self.kv_phase(0); kv1 = self.kv_phase(1)
        ffn = self.ffn(); q = self.q_phase()
        att = self.attention()
        op = self.o_phase()
        fin = self.finish()
        traces = [[setup, start, kv, ffn, q] + a + [op, fin] for kv in (kv0, kv1) for a in att]
        derive_waits(traces)
        allb = self.blocks + self.tail
        finalize_waits(allb)
        errs = []
        for tr in traces: errs += check_hazards(tr)
        for b in self.tail: errs += check_hazards([b])
        for e in sorted(set(errs)): print(e, file=sys.stderr)
        if errs: raise SystemExit('hazards found')
        hdr = open('cdna_kernels/%s.s.ref' % NAME).read().split('; Override')[0]
        out = hdr + '; @launch grid=(256,1,1) block=(256,1,1) lds=%d\n' % LDS_BYTES
        out += '.amdgcn_target "amdgcn-amd-amdhsa--gfx950"\n.text\n.globl %s_kernel\n.p2align 8\n.type %s_kernel,@function\n%s_kernel:\n' % (NAME, NAME, NAME)
        out += render(allb)
        out += '.section .rodata,"a"\n.p2align 6\n.amdhsa_kernel %s_kernel\n' % NAME
        out += '  .amdhsa_next_free_vgpr 512\n  .amdhsa_next_free_sgpr 102\n  .amdhsa_accum_offset 256\n  .amdhsa_group_segment_fixed_size 0\n'
        out += '  .amdhsa_kernarg_size 120\n  .amdhsa_user_sgpr_count 2\n  .amdhsa_user_sgpr_kernarg_segment_ptr 1\n  .amdhsa_system_sgpr_workgroup_id_x 1\n.end_amdhsa_kernel\n'
        return out

if __name__ == '__main__':
    g = Gen(stamps='stamps' in sys.argv[2:])
    open(sys.argv[1], 'w').write(g.build())
```

```python
import sys, math
from asmlib import *

NAME = 'gated_mix__compressed_kv_cla__moe_arch_mod__prompt'

KBUF  = 0
VBUF  = 16 << 20
CTXB  = 32 << 20
PART  = 48 << 20
MISC  = 68 << 20
GBUF  = MISC
KEYB  = MISC + 8192
YACC  = MISC + 16384
FLAG  = MISC + 65536
TIMB  = MISC + (1 << 19)
WS_BYTES = 70 << 20
F_KV, F_KV2, F_CA, F_CB, F_PL, F_PH, F_FF = range(7)
OOB = 0x7ffffff0

XC, XA, XB = 0, 32768, 65536
WK0, WV0, WK1, WV1 = 98304, 114688, 131072, 147456
LDS_BYTES = 163840

def srd(n): return 's[%d:%d]' % (n, n + 3)
R_WS, R_X, R_C, R_WK, R_WV, R_WQ, R_WO, R_OUT, R_DBG, R_WR, R_GW, R_WG, R_WU, R_WD = range(4, 60, 4)
sW, sX, sY, sJ, sH = 60, 61, 62, 63, 3
sCo = [None] + list(range(64, 71))
sWo = [None] + list(range(71, 74))
sXo = [None] + list(range(74, 81))
sMC, sMW = 81, 82
sT0, sT1, sT2, sT3 = 83, 84, 85, 86
sSt = 87
sRet = 88
sTs = 90
sCnt = 92
sTok = 93
sFf = 70
sXcc, sLocal = 0, 1
sK, sV, sR, sOld, sD, sSpin = 64, 65, 66, 67, 68, 69
sTri = list(range(71, 76)); sNone = list(range(76, 81))
def so(lst, i): return '0' if lst[i] is None else 's%d' % lst[i]

def v4(n): return 'v[%d:%d]' % (n, n + 3)
def a4(n): return 'a[%d:%d]' % (n, n + 3)
def rr(r, n=4):
    f, i = r
    return '%s[%d:%d]' % (f, i, i + n - 1) if n > 1 else '%s%d' % (f, i)
def mfma(d, a, b, c):
    return 'v_mfma_f32_16x16x32_bf16 %s, %s, %s, %s' % (rr(d), rr(a), rr(b), c if isinstance(c, str) else rr(c))

vC = [0, 1]; vW = [2, 3]; vRC = [4, 5]; vRW = list(range(6, 14)); vL16 = 14; vT = 15
vPf = 16; vPq = 18
R_PF = 76; sPfO = 88; sPfS = 89
vRX2 = [16, 17]; vRd = 18; vPoll = 19; vE = [20, 21]; vM = 22; vM2 = 23; vB = 24; vLs = 28
QB = 32; PB = 160; NB = 192; vTs = 208; vU = 212
def qacc(i, qt): return ('v', QB + (qt * 8 + i) * 4)
def qfrag(qt, ds): return qacc(2 * ds, qt)
def hole(qt, n): return qacc(2 * n + 1, qt)
def stile(mode, par, kt, qt):
    if mode == 'd': return hole(qt, 2 * par + kt)
    return hole((qt - 2) * 2 + (kt >> 1), 2 * par + (kt & 1))
def pfrag(mode, par, qt, ks):
    n = qt if mode == 'd' else (qt - 2) * 2 + ks
    return ('v', PB + 16 * par + 4 * n)
def negm(qt): return ('v', NB + 4 * qt)
def oacc(dt, qt): return ('a', (qt * 8 + dt) * 4)
def fifo(n): return ('a', 128 + 4 * (n & 15))
vWo = list(range(228, 237)); vRO = [237, 238, 239]
vX = 240
def pctx(blk, n, qt, ks):
    if n == 0: return qfrag(2 * blk + qt, ks)
    i = ((n - 1) * 8 + qt * 4 + ks) * 4
    return ('a', 64 * blk + i) if i < 64 else ('a', 192 + 32 * blk + i - 64)
def lacc(u, qt):
    n = 2 * u + qt
    return hole(n >> 2, n & 3) if n < 16 else ('v', PB + 4 * (n - 16))
def hacc(u, qt):
    n = 2 * u + qt
    return qfrag(n >> 2, n & 3) if n < 8 else ('v', PB + 8 + 4 * (n - 8))
vWo7 = [16, 17]
sWoS = [12, 13, 14, 15]; sPc = [16, 17, 18]; sPart = 19; sA, sB = 20, 21; sWoM1 = 22; sRsel = 23; sWo7 = 87; sPart2 = 64; sPc4 = 65
BIGN = 0xf1800000
THR = 0x49800000
QSCALE = 0x3e0293ee

class Stream:
    def __init__(self, n):
        self.n = n; self.front = [[] for _ in range(n)]; self.gaps = [[] for _ in range(n)]
    def cost(self, g):
        c = 0
        for t in self.front[g] + self.gaps[g]:
            for x in t.split('\n'):
                if x.startswith('buffer') or x.startswith('v_exp') or x.startswith('v_rcp'): c += 8
                elif x.startswith('ds_') or x.startswith('v_'): c += 4
        return c
    def has_vmem(self, g): return 0 <= g < self.n and any(t.startswith('buffer') for t in self.front[g] + self.gaps[g])
    def vmem(self, groups, g, sp):
        for grp in groups:
            if not any(t.startswith('buffer') for t in grp):
                self.front[g] += grp; g += 1; continue
            while any(self.has_vmem(x) for x in range(g - sp + 1, g + sp)): g += 1
            self.front[g] += grp; g += 1
        return g
    def valu(self, seq, g, cap=8):
        for (e, t) in seq:
            if e > g: g = e
            if t.startswith('buffer'):
                g += 1
                while any(self.has_vmem(x) for x in range(g - 1, g + 2)): g += 1
                self.front[g].append(t); continue
            if t.startswith('s_') and not t.startswith('s_nop'):
                self.gaps[g].append(t); continue
            while self.cost(g) >= (cap(g) if callable(cap) else cap): g += 1
            self.gaps[g].append(t)
        return g

class Gen:
    def __init__(self, stop=None, stamps=False):
        self.stop = stop; self.stamps = stamps
        self.blocks = []; self.tail = []
        self.nstamp = 0; self.uid = 0; self.opt = {}
    def blk(self, name, tail=False):
        b = Block(name); (self.tail if tail else self.blocks).append(b); return b
    def lab(self, p):
        self.uid += 1; return 'L_%s_%d' % (p, self.uid)
    STAMP = [96, 97, 98, 99, 100, 101, 40, 41, 42, 43, 44, 45, 46, 47]
    def stamp(self, name):
        out = []
        for nm, ins in ((str(name), 's_memrealtime'), (str(name) + 'c', 's_memtime')):
            if self.stamps and nm in self.stamps:
                out += ['%s s[%d:%d]' % (ins, sTs, sTs + 1), 's_waitcnt lgkmcnt(0)', 's_mov_b32 s%d, s%d' % (self.STAMP[self.stamps.index(nm)], sTs)]
        return out

    def setup(self):
        b = self.blk('setup')
        b('s_cmp_ge_u32 s2, 256\ns_cbranch_scc1 L_end')
        b('s_load_dwordx16 s[64:79], s[0:1], 0\ns_load_dwordx8 s[80:87], s[0:1], 64')
        b('s_load_dwordx4 s[88:91], s[0:1], 96\ns_load_dwordx2 s[92:93], s[0:1], 112')
        b('v_lshrrev_b32 v16, 6, v0\nv_and_b32 v17, 63, v0')
        b('s_and_b32 s%d, s2, 7' % sX)
        b('v_readfirstlane_b32 s%d, v16' % sW)
        b('s_lshr_b32 s%d, s2, 3\ns_and_b32 s%d, s%d, 3' % (sY, sY, sY))
        b('s_lshr_b32 s%d, s2, 5' % sJ)
        b('s_lshl_b32 s%d, s%d, 2\ns_add_u32 s%d, s%d, s%d' % (sH, sX, sH, sH, sY))
        b('v_lshlrev_b32 v%d, 4, v17' % vL16)
        sizes = {R_WS: WS_BYTES, R_X: 2359296, R_C: 2097152, R_WK: 4194304, R_WV: 4194304, R_WQ: 4718592,
                 R_WO: 4718592, R_OUT: 2359296, R_DBG: 256, R_WR: 1152, R_GW: 1152, R_WG: 5308416,
                 R_WU: 5308416, R_WD: 5308416}
        for r, sz in sizes.items():
            b('s_mov_b32 s%d, %d\ns_mov_b32 s%d, 0x20000' % (r + 2, sz, r + 3))
        l = 17
        b('v_lshrrev_b32 v18, 3, v%d\nv_lshrrev_b32 v19, 4, v%d\nv_and_b32 v20, 7, v%d' % (l, l, l))
        b('v_xor_b32 v20, v20, v19\nv_lshlrev_b32 v20, 4, v20')
        b('s_lshl_b32 s94, s%d, 15\ns_lshl_b32 s95, s%d, 19\ns_add_u32 s94, s94, s95' % (sJ, sW))
        b('v_lshl_add_u32 v21, v18, 10, v20\nv_add_u32 v%d, s94, v21' % vC[0])
        b('v_xor_b32 v%d, 64, v%d' % (vC[1], vC[0]))
        b('v_bfe_u32 v21, v%d, 1, 3\nv_xor_b32 v21, v21, v19\nv_lshlrev_b32 v21, 5, v21' % l)
        b('v_and_b32 v22, 1, v%d\nv_lshl_add_u32 v21, v22, 4, v21\nv_lshl_add_u32 v21, v19, 13, v21' % l)
        b('s_lshl_b32 s94, s%d, 17\ns_lshl_b32 s95, s%d, 8\ns_add_u32 s94, s94, s95' % (sW, sH))
        b('v_add_u32 v%d, s94, v21\nv_xor_b32 v%d, 0x80, v%d' % (vW[0], vW[1], vW[0]))
        b('s_waitcnt lgkmcnt(0)')
        ptr = {R_X: 64, R_C: 66, R_WQ: 68, R_WK: 70, R_WV: 72, R_WO: 74, R_WR: 78, R_WG: 80, R_WU: 82,
               R_WD: 84, R_GW: 86, R_OUT: 88, R_DBG: 90, R_WS: 92}
        for r, p in ptr.items():
            b('s_mov_b64 s[%d:%d], s[%d:%d]' % (r, r + 1, p, p + 1))
        wsoff = int(self.opt.get('wsoff', 0)) << 20
        if wsoff: b('s_add_u32 s%d, s%d, %d\ns_addc_u32 s%d, s%d, 0' % (R_WS, R_WS, wsoff, R_WS + 1, R_WS + 1))
        b('s_getreg_b32 s%d, hwreg(HW_REG_XCC_ID, 0, 4)' % sXcc)
        for t in self.stamp(0): b(t)
        for i in range(1, 8): b('s_mov_b32 s%d, %d' % (sCo[i], (i & 3) * 7168 + (i >> 2) * 262144))
        for i in range(1, 4): b('s_mov_b32 s%d, %d' % (sWo[i], i * 31744))
        b('s_lshl_b32 s%d, s%d, 13\ns_lshl_b32 s%d, s%d, 12' % (sMC, sW, sMW, sW))
        return b

    def kv_dma(self, s):
        p = s & 1; out = []
        for i in range(8):
            g = []
            if i % 4 == 0: g.append('s_add_u32 m0, s%d, %d' % (sMC, XA + p * 32768 + (i >> 2) * 4096)); out.append(g); g = []
            g.append('buffer_load_dwordx4 v%d, %s, %s offen offset:%d lds @pj' % (vC[i & 1], srd(R_C), so(sCo, i), (i & 3) * 1024))
            out.append(g)
        for R, base in ((R_WK, WK0), (R_WV, WV0)):
            out.append(['s_add_u32 m0, s%d, %d' % (sMW, base + p * 32768)])
            for i in range(4):
                out.append(['buffer_load_dwordx4 v%d, %s, %s offen offset:%d lds @pj' % (vW[i >> 1], srd(R), so(sWo, i), i * 1024)])
        return out
    def kv_dma_adv(self):
        return ['v_add_u32 v%d, 0x80, v%d' % (vC[0], vC[0]), 'v_add_u32 v%d, 0x80, v%d' % (vC[1], vC[1]),
                'v_add_u32 v%d, 0x80000, v%d' % (vW[0], vW[0]), 'v_add_u32 v%d, 0x80000, v%d' % (vW[1], vW[1])]
    def kv_pf(self):
        return ['buffer_load_dword a100, v%d, %s, s%d offen @pf' % (vPf, srd(R_PF), sPfO), 's_add_u32 s%d, s%d, s%d' % (sPfO, sPfO, sPfS)]
    QX = [XC, XA, XB]; QW = [WK0, WV0, WK1]
    def q_dma(self, s):
        sl = s % 3; out = []
        for i in range(8):
            if i % 4 == 0: out.append(['s_add_u32 m0, s%d, %d' % (sMC, self.QX[sl] + (i >> 2) * 4096)])
            out.append(['buffer_load_dwordx4 v%d, %s, %s offen offset:%d lds @q%d' % (vC[i & 1], srd(R_X), so(sXo, i), (i & 3) * 1024, s)])
        out.append(['s_add_u32 m0, s%d, %d' % (sMW, self.QW[sl])])
        for i in range(4):
            out.append(['buffer_load_dwordx4 v%d, %s, %s offen offset:%d lds @q%d' % (vW[i >> 1], srd(R_WQ), so(sWo, i), i * 1024, s)])
        return out

    @staticmethod
    def merge_m0(groups):
        out = []; pend = []
        for g in groups:
            if g[0].startswith('s_add_u32 m0'):
                if out: out[-1] = out[-1] + g
                else: out.append(g)
            else: out.append(g)
        return out

    def start(self):
        b = self.blk('start')
        l = 17
        b('v_and_b32 v22, 31, v%d\nv_lshlrev_b32 v22, 4, v22' % l)
        b('v_lshrrev_b32 v23, 5, v%d' % l)
        b('s_lshl_b32 s94, s2, 3\ns_lshl_b32 s95, s%d, 1\ns_add_u32 s94, s94, s95' % sW)
        b('v_add_u32 v23, s94, v23')
        b('s_movk_i32 s95, 1152\nv_mul_lo_u32 v24, v23, s95\nv_add_u32 v24, v24, v22')
        b('v_cmp_gt_u32 vcc, 0x80, v22\nv_mov_b32 v26, %d\nv_add_u32 v25, 0x400, v24' % OOB)
        b('v_cndmask_b32 v25, v26, v25, vcc')
        b('buffer_load_dwordx4 v[28:31], v24, %s, 0 offen' % srd(R_X))
        b('buffer_load_dwordx4 v[32:35], v24, %s, 0 offen offset:512' % srd(R_X))
        b('buffer_load_dwordx4 v[36:39], v25, %s, 0 offen' % srd(R_X))
        for k, R in enumerate((R_WR, R_GW)):
            for i in range(3):
                b('buffer_load_dwordx4 %s, v22, %s, 0 offen offset:%d' % (v4(40 + 12 * k + 4 * i), srd(R), 512 * i))
        for s in (0,):
            for g in self.kv_dma(s):
                for t in g:
                    b(t)
                    if t.startswith('s_add_u32 m0'): b('s_nop 0')
            for t in self.kv_dma_adv(): b(t)
        self.npf = 0; ncp = 0
        if int(self.opt.get('cpf', 1)):
            b('s_getpc_b64 s[%d:%d]\nL_pc:\ns_mov_b32 s%d, L_end-L_pc\ns_mov_b32 s%d, 0x20000' % (R_PF, R_PF + 1, R_PF + 2, R_PF + 3))
            b('s_lshr_b32 s94, s2, 3\ns_lshl_b32 s94, s94, 2\ns_add_u32 s94, s94, s%d\ns_lshl_b32 s94, s94, 10' % sW)
            b('v_min_u32 v64, 7, v%d\nv_lshlrev_b32 v64, 7, v64\nbuffer_load_dword a100, v64, %s, s94 offen @pf' % (l, srd(R_PF)))
            ncp = 1
        if int(self.opt.get('pf', 1)):
            b('s_cmp_eq_u32 s%d, 2\ns_cselect_b64 s[%d:%d], s[%d:%d], s[%d:%d]' % (sW, R_PF, R_PF + 1, R_WK, R_WK + 1, R_WV, R_WV + 1))
            b('s_cmp_lt_u32 s%d, 2\ns_cselect_b64 s[%d:%d], s[%d:%d], s[%d:%d]' % (sW, R_PF, R_PF + 1, R_C, R_C + 1, R_PF, R_PF + 1))
            b('s_cselect_b32 s%d, s%d, s%d\ns_mov_b32 s%d, 0x20000' % (R_PF + 2, R_C + 2, R_WK + 2, R_PF + 3))
            b('s_mov_b32 s94, 0x80000\ns_cselect_b32 s%d, 0x80, s94\ns_mov_b32 s%d, s%d' % (sPfS, sPfO, sPfS))
            b('s_lshl_b32 s94, s%d, 1\ns_add_u32 s94, s94, s%d\ns_lshl_b32 s94, s94, 3\ns_add_u32 s94, s94, s%d\ns_lshl_b32 s94, s94, 15' % (sY, sW, sJ))
            b('v_lshlrev_b32 v64, 10, v%d\nv_add_u32 v64, s94, v64\nv_cmp_gt_u32 vcc, 32, v%d' % (l, l))
            b('v_bfe_u32 v65, v%d, 1, 3\nv_lshlrev_b32 v65, 13, v65\nv_cndmask_b32 v64, v26, v64, vcc' % l)
            b('v_and_b32 v66, 1, v%d\nv_lshl_add_u32 v65, v66, 7, v65\nv_cmp_gt_u32 vcc, 16, v%d' % (l, l))
            b('s_lshl_b32 s94, s%d, 16\ns_lshl_b32 s95, s%d, 8\ns_add_u32 s94, s94, s95\nv_add_u32 v65, s94, v65\nv_cndmask_b32 v65, v26, v65, vcc' % (sJ, sH))
            b('s_cmp_lt_u32 s%d, 2\ns_cselect_b64 vcc, -1, 0\nv_cndmask_b32 v%d, v65, v64, vcc' % (sW, vPf))
            for t in self.kv_pf() + self.kv_pf(): b(t)
            self.npf = 2
        b('v_and_b32 v64, 15, v%d\nv_lshrrev_b32 v65, 4, v%d\nv_bfe_u32 v66, v%d, 1, 3' % (l, l, l))
        b('v_xor_b32 v66, v66, v65\nv_lshlrev_b32 v66, 4, v66\nv_lshl_add_u32 v66, v64, 7, v66')
        b('s_and_b32 s94, s%d, 1\ns_lshl_b32 s94, s94, 12\ns_add_u32 s94, s94, %d' % (sW, XA))
        b('v_add_u32 v%d, s94, v66\nv_xor_b32 v%d, 64, v%d' % (vRC[0], vRC[1], vRC[0]))
        b('v_bfe_u32 v66, v%d, 2, 2\nv_and_b32 v67, 1, v65\nv_lshl_add_u32 v67, v67, 2, v66' % l)
        b('v_lshl_add_u32 v68, v65, 3, v66\nv_lshlrev_b32 v68, 8, v68\nv_and_b32 v69, 3, v%d' % l)
        b('v_lshl_add_u32 v68, v69, 3, v68')
        b('s_lshr_b32 s94, s%d, 1\ns_lshl_b32 s94, s94, 14\ns_add_u32 s94, s94, %d' % (sW, WK0))
        b('v_add_u32 v68, s94, v68')
        for u in range(8):
            b('v_xor_b32 v69, %d, v67\nv_lshl_add_u32 v%d, v69, 5, v68' % (u, vRW[u]))
        b('v_mov_b32 v72, 0\nv_mov_b32 v73, 0\nv_mov_b32 v74, 0\nv_mov_b32 v75, 0')
        b('s_lshl_b32 s94, s2, 6\ns_add_u32 s94, s94, %d' % FLAG)
        b('v_lshlrev_b32 v70, 14, v%d\nv_add_u32 v70, s94, v70' % l)
        b('s_cmp_eq_u32 s%d, 0\ns_cselect_b32 s95, 7, 0' % sW)
        b('v_cmp_gt_u32 vcc, s95, v%d\ns_nop 1\nv_cndmask_b32 v70, v26, v70, vcc' % l)
        b('buffer_store_dword v72, v70, %s, 0 offen sc1 @st0' % srd(R_WS))
        b('s_lshl_b32 s94, s2, 12\ns_lshl_b32 s95, s%d, 10\ns_add_u32 s94, s94, s95\ns_add_u32 s94, s94, %d' % (sW, YACC))
        b('s_cmp_lt_u32 s2, 8\ns_cselect_b32 s94, s94, %d' % OOB)
        b('v_add_u32 v71, s94, v%d' % vL16)
        b('buffer_store_dwordx4 v[72:75], v71, %s, 0 offen sc1 @st0' % srd(R_WS))
        b.autowait()
        b('v_mov_b32 v64, 0\nv_mov_b32 v65, 0')
        for i in range(12):
            b('v_dot2_f32_bf16 v64, v%d, v%d, v64\nv_dot2_f32_bf16 v65, v%d, v%d, v65' % (28 + i, 40 + i, 28 + i, 52 + i))
        b('s_nop 2')
        for dpp in ('quad_perm:[1,0,3,2]', 'quad_perm:[2,3,0,1]', 'row_half_mirror', 'row_mirror'):
            b('v_add_f32_dpp v64, v64, v64 %s row_mask:0xf bank_mask:0xf' % dpp)
            b('v_add_f32_dpp v65, v65, v65 %s row_mask:0xf bank_mask:0xf' % dpp)
            b('s_nop 0')
        b('v_mov_b32 v66, v64\nv_mov_b32 v67, v65\ns_nop 1')
        b('v_permlane16_swap_b32 v64, v66\nv_permlane16_swap_b32 v65, v67')
        b('v_add_f32 v64, v64, v66\nv_add_f32 v65, v65, v67')
        b('v_mul_f32 v65, 0xbfb8aa3b, v65\nv_exp_f32 v65, v65')
        b('v_ashrrev_i32 v66, 31, v64\nv_or_b32 v66, 0x80000000, v66\nv_xor_b32 v66, v66, v64')
        b('v_add_f32 v65, 1.0, v65\nv_rcp_f32 v65, v65')
        b('v_and_b32 v66, 0xfffff800, v66\nv_sub_u32 v67, 0x7ff, v23\nv_or_b32 v66, v66, v67')
        b('v_mov_b32 v67, v66\nv_lshlrev_b32 v68, 2, v23\nv_add_u32 v68, %d, v68' % GBUF)
        b('v_permlane32_swap_b32 v66, v67')
        b('v_cmp_eq_u32 vcc, 0, v22\nv_max_u32 v66, v66, v67\ns_nop 0\nv_cndmask_b32 v68, v26, v68, vcc')
        b('buffer_store_dword v65, v68, %s, 0 offen sc1 @st0' % srd(R_WS))
        b('s_lshl_b32 s94, s2, 4\ns_lshl_b32 s95, s%d, 2\ns_add_u32 s94, s94, s95\ns_add_u32 s94, s94, %d' % (sW, KEYB))
        b('v_mov_b32 v69, s94\nv_cmp_eq_u32 vcc, 0, v%d\ns_nop 1\nv_cndmask_b32 v69, v26, v69, vcc' % l)
        b('buffer_store_dword v66, v69, %s, 0 offen sc1 @st0' % srd(R_WS))
        b('s_waitcnt vmcnt(%d)\ns_barrier' % (4 + self.npf + ncp))
        for t in self.kv_reads(0): b(t)
        b('s_cmp_ge_u32 s%d, 2\ns_cbranch_scc1 L_kv1' % sW)
        return b

    @staticmethod
    def cfrag(k, t): return ('a', 128 + 64 * (k & 1) + 4 * t)
    @staticmethod
    def wfrag(k, u): return ('a', 128 + 64 * (k & 1) + 32 + 4 * u)
    KVSLOT = [0, 1, 14, 15, 16, 17, 30, 31]; KVDST = [16, 24, 128, 136, 144, 152, 132, 140]
    for _n, _hi in enumerate((27, 25, 29, 23, 21, 19)):
        KVSLOT += [_hi, _hi - 1, 2 + 2 * _n, 3 + 2 * _n]
        KVDST += [16 + 8 * _hi, 8 + 8 * _hi, 20 + 8 * _hi, 12 + 8 * _hi]
    @staticmethod
    def kvpair(a, pr):
        return (pr & 3, 2 * (pr >> 3) + ((pr >> 2) & 1)) if a == 0 else (pr >> 3, pr & 7)
    def kvacc(self, a, i, jj):
        pr = [p for p in range(32) if self.kvpair(a, p) == (i >> 1, jj)][0]
        sl = self.KVSLOT[pr]
        if sl == 0: return ('a', 104 + 4 * (i & 1))
        return ('v', 16 + 8 * sl + 4 * (i & 1)) if sl < 30 else ('a', 112 + 8 * (sl - 30) + 4 * (i & 1))
    def kv_store(self, pr):
        off = (pr >> 3) * 131072 + (pr & 7) * 1024
        return ['s_add_u32 s%d, s%d, %d' % (sT0 + (pr & 1), sSt, off & ~4095),
                'buffer_store_dwordx4 %s, v%d, %s, s%d offen offset:%d %s @kvs%d' % (v4(self.KVDST[pr]), vL16, srd(R_WS), sT0 + (pr & 1), off & 4095, self.opt.get('stf', '').replace('+', ' '), pr >= 8)]
    def kv_reads(self, k):
        p, ks = (k >> 1) & 1, k & 1; out = []
        for t in range(8):
            f = self.wfrag(k, t)
            for hf in range(2):
                out.append('ds_read_b64_tr_b16 %s, v%d offset:%d' % (rr((f[0], f[1] + 2 * hf), 2), vRW[t], p * 32768 + (32 * ks + 4 * hf) * 256))
            out.append('ds_read_b128 %s, v%d offset:%d' % (rr(self.cfrag(k, t)), vRC[ks], p * 32768 + (t >> 1) * 8192 + (t & 1) * 2048))
        return out
    @staticmethod
    def qxfrag(k, t): return ('a', 128 + 48 * (k & 1) + 4 * t)
    @staticmethod
    def qwfrag(k, u): return ('a', 128 + 48 * (k & 1) + 16 + 4 * u)
    def q_reads(self, k):
        sl, ks = (k >> 1) % 3, k & 1; out = []
        for u in range(8):
            f = self.qwfrag(k, u)
            for hf in range(2):
                out.append('ds_read_b64_tr_b16 %s, v%d offset:%d' % (rr((f[0], f[1] + 2 * hf), 2), vRW[u], self.QW[sl] - WK0 + (32 * ks + 4 * hf) * 256))
            if u < 4:
                if sl < 2: out.append('ds_read_b128 %s, v%d offset:%d' % (rr(self.qxfrag(k, u)), vRC[ks], self.QX[sl] + u * 2048))
                else: out.append('ds_read_b128 %s, v%d offset:%d' % (rr(self.qxfrag(k, u)), vRX2[ks], u * 2048))
        return out

    def kv_phase(self, a):
        b = self.blk('kv%d' % a)
        if a == 1: b('L_kv1:')
        b.autowait()
        for t in self.stamp(1): b(t)
        BAR = int(self.opt.get('kvbar', 24)); SP = int(self.opt.get('kvsp', 5))
        adv = self.kv_dma_adv()
        carry = self.merge_m0(self.kv_dma(1)) + [adv[:2], adv[2:]]
        for k in range(16):
            s = k >> 1
            last = k == 15
            order = [(i, jj) for i in range(8) for jj in range(8)]
            if last: order = [(2 * self.kvpair(a, pr)[0] + h, self.kvpair(a, pr)[1]) for pr in range(32) for h in range(2)]
            ms = []
            for (i, jj) in order:
                A, B = (self.wfrag(k, i), self.cfrag(k, jj)) if a == 0 else (self.cfrag(k, i), self.wfrag(k, jj))
                d = self.kvacc(a, i, jj)
                ms.append(mfma(d, A, B, '0' if k == 0 else d))
            front = [[] for _ in range(64)]; gaps = [[] for _ in range(64)]
            bar = (0 if last else BAR) if (k & 1) else None
            sp = 4 if k in (0, 13, 14, 15) else SP
            def spread(lo, hi):
                g = lo
                while carry and g < hi:
                    grp = carry.pop(0)
                    if grp[0].startswith('v_'): gaps[g] += grp; g += 1
                    elif grp[0].startswith('s_'): front[g] += grp; g += 1
                    else: front[g] += grp; g += sp
            if bar is None: spread(0, 64)
            else:
                spread(0, bar - 8)
                assert not carry, k
                w = 'WAIT q0:0 lgkm0' if s == 7 else ('WAIT pj:0 lgkm0' if s == 0 else 'WAIT pj:0 st0:0 lgkm0')
                front[bar] += self.stamp('kva%d' % s) + [w, 's_barrier'] + self.stamp('kvb%d' % s)
                if s <= 5: carry = self.kv_dma(s + 2)
                elif s == 6: carry = self.q_dma(0) + [adv[:2], adv[2:]] + self.q_dma(1)
                else: carry = self.q_dma(2)
                carry = self.merge_m0(carry) + [adv[:2], adv[2:]]
                if s == 5:
                    carry.append(['v_lshrrev_b32 v%d, 7, v%d' % (vT, vL16), 'v_and_b32 v%d, 0x70, v%d' % (vC[0], vC[0])])
                    carry.append(['s_lshl_b32 s94, s%d, 7' % sJ, 's_lshl_b32 s95, s%d, 5' % sW, 's_add_u32 s94, s94, s95'])
                    carry.append(['v_add_u32 v%d, s94, v%d' % (vT, vT), 'v_mul_u32_u24 v%d, 0x480, v%d' % (vT, vT)])
                    carry.append(['v_add_u32 v%d, v%d, v%d' % (vC[0], vC[0], vT), 'v_xor_b32 v%d, 64, v%d' % (vC[1], vC[0])])
                    carry.append(['v_subrev_u32 v%d, 0x400000, v%d' % (vW[0], vW[0]), 'v_subrev_u32 v%d, 0x400000, v%d' % (vW[1], vW[1])])
                    carry.append(['s_lshl_b32 s94, s%d, 1' % sJ, 's_sub_u32 s94, 15, s94', 's_mul_i32 s94, s94, %d' % (128 * 1152)])
                    for i in range(1, 8):
                        carry.append(['s_mov_b32 s%d, %d' % (sXo[i], (i & 3) * 8192)] if i < 4 else ['s_add_u32 s%d, s94, %d' % (sXo[i], (i & 3) * 8192)])
                spread(bar + 1, 64)
            if self.npf and k % 2 == 0 and k <= 8:
                g = 60 if k else 62
                while any(t.startswith('buffer') for t in front[g]): g += 1
                front[g] += self.kv_pf()
            if k in (4, 6, 8, 10):
                g = 44
                if k == 4: gaps[g - 2] += ['s_or_b32 s%d, s%d, 0x80' % (sXcc, sXcc), 'v_mov_b32 v19, s%d' % sXcc]
                gaps[g] += ['s_lshr_b32 s94, s%d, 1' % sJ, 's_xor_b32 s94, s94, %d' % ((k - 4) // 2), 's_or_b32 s94, s94, s%d' % sW,
                            's_cselect_b32 s94, 0x100000, s2', 'v_lshl_add_u32 v%d, v%d, 4, s94' % (vT, vL16)]
                front[g + 2] += ['buffer_store_byte v19, v%d, %s, 0 offen sc1' % (vT, srd(R_DBG))]
            if k == 6 and 'nopfq' not in self.opt:
                q = [['s_lshl_b32 s94, s%d, 1' % sJ, 's_sub_u32 s94, 15, s94', 's_lshl_b32 s94, s94, 7', 's_sub_u32 s94, s94, 32', 'v_lshrrev_b32 v%d, 9, v%d' % (vPq, vL16)],
                     ['v_mul_u32_u24 v%d, s94, v%d' % (vPq, vPq), 's_lshl_b32 s94, s%d, 7' % sJ, 's_lshl_b32 s95, s%d, 5' % sY, 's_add_u32 s94, s94, s95'],
                     ['v_lshl_add_u32 v%d, v%d, 4, v%d' % (vPq, vPq, vL16), 'v_lshrrev_b32 v%d, 4, v%d' % (vPq, vPq)],
                     ['v_add_u32 v%d, s94, v%d' % (vPq, vPq), 'v_mul_u32_u24 v%d, 0x480, v%d' % (vPq, vPq), 's_lshl_b32 s95, s%d, 7' % sW]]
                for i, grp in enumerate(q): gaps[52 + i] += grp
                front[57] += ['buffer_load_dword a101, v%d, %s, s95 offen @pf' % (vPq, srd(R_X))]
            if k == 8 and 'nopfq' not in self.opt:
                front[56] += ['s_lshl_b32 s95, s%d, 7' % sW, 'buffer_load_dword a101, v%d, %s, s95 offen offset:512 @pf' % (vPq, srd(R_X))]
            if k == 10 and 'nopfq' not in self.opt:
                front[54] += ['s_cmp_eq_u32 s%d, 0' % sW, 's_cselect_b32 s95, 0, %d' % OOB, 'buffer_load_dword a101, v%d, %s, s95 offen offset:1024 @pf' % (vPq, srd(R_X))]
                gaps[56] += ['s_mul_i32 s94, s%d, 72' % sJ, 's_mul_i32 s95, s%d, 18' % sW, 's_add_u32 s94, s94, s95', 's_lshl_b32 s94, s94, 13', 'v_lshrrev_b32 v%d, 5, v%d' % (vPq, vL16)]
                gaps[57] += ['s_lshl_b32 s95, s%d, 8' % sH, 's_add_u32 s94, s94, s95', 'v_min_u32 v%d, 17, v%d' % (vPq, vPq), 'v_lshlrev_b32 v%d, 13, v%d' % (vPq, vPq)]
                front[60] += ['buffer_load_dword a101, v%d, %s, s94 offen @pf' % (vPq, srd(R_WQ))]
                front[62] += ['buffer_load_dword a101, v%d, %s, s94 offen offset:128 @pf' % (vPq, srd(R_WQ))]
            if k == 13:
                gaps[61] += ['v_lshrrev_b32 v%d, 2, v%d' % (vT, vL16)]
                front[63] += ['buffer_load_dword v%d, v%d, %s, 0 offen sc1' % (vT, vT, srd(R_DBG))]
            if not last:
                rd = self.kv_reads(k + 1); g = 2 if bar is None else bar + 1
            else:
                gaps[1] += ['s_and_b32 s94, s%d, 1' % sW, 's_lshl_b32 s94, s94, 12', 's_add_u32 s94, s94, %d' % XA,
                            's_sub_u32 s94, s%d, s94' % sMC, 'v_add_u32 v%d, s94, v%d' % (vRC[0], vRC[0]), 'v_add_u32 v%d, s94, v%d' % (vRC[1], vRC[1])]
                if a == 1:
                    for u in range(0, 8, 2):
                        gaps[2 + u // 2] += ['v_subrev_u32 v%d, 0x4000, v%d' % (vRW[u], vRW[u]), 'v_subrev_u32 v%d, 0x4000, v%d' % (vRW[u + 1], vRW[u + 1])]
                rd = self.q_reads(0); g = 30
            free = [x for x in range(g, 58) if not any(not t.startswith('s_') for t in front[x])]
            if 'rdense' in self.opt or last: free = free[:len(rd)]
            assert len(free) >= len(rd), k
            for i, t in enumerate(rd): front[free[i * len(free) // len(rd)]].append(t)
            x = self.opt.get('kx', '')
            if 2 <= k <= 12:
                for g in range(64):
                    front[g] = [t for t in front[g] if not (('d' in x and t.startswith('buffer_load_dwordx4')) or ('r' in x and t.startswith('ds_read'))
                                                           or ('b' in x and t.startswith('s_barrier')) or ('w' in x and t.startswith('WAIT')))]
            spill = []
            if last:
                base = KBUF if a == 0 else VBUF
                gaps[1] += ['s_lshl_b32 s%d, s%d, 19' % (sSt, sH), 's_lshl_b32 s94, s%d, 13' % sJ, 's_add_u32 s%d, s%d, s94' % (sSt, sSt)]
                gaps[2] += ['s_and_b32 s94, s%d, 1' % sW, 's_lshl_b32 s94, s94, 16', 's_add_u32 s%d, s%d, s94' % (sSt, sSt)]
                if base: gaps[3] += ['s_add_u32 s%d, s%d, %d' % (sSt, sSt, base)]
                for pr in range(32):
                    a2, jj = self.kvpair(a, pr)
                    d0, d1 = self.kvacc(a, 2 * a2, jj), self.kvacc(a, 2 * a2 + 1, jj)
                    z = self.KVDST[pr]
                    g = []
                    if d0[0] == 'a':
                        t0, t1 = (z, z + 16) if pr else (16, 20)
                        for r in range(4):
                            g.append('v_accvgpr_read_b32 v%d, a%d' % (t0 + r, d0[1] + r))
                            g.append('v_accvgpr_read_b32 v%d, a%d' % (t1 + r, d1[1] + r))
                        d0, d1 = ('v', t0), ('v', t1)
                    x, y = d0[1], d1[1]
                    g += ['v_cvt_pk_bf16_f32 v%d, v%d, v%d' % (z, x, x + 1), 'v_cvt_pk_bf16_f32 v%d, v%d, v%d' % (z + 1, x + 2, x + 3),
                          'v_cvt_pk_bf16_f32 v%d, v%d, v%d' % (z + 2, y, y + 1), 'v_cvt_pk_bf16_f32 v%d, v%d, v%d' % (z + 3, y + 2, y + 3)]
                    gp = 2 * pr + 1 + 4
                    if gp + 1 < 64:
                        h = len(g) // 2
                        gaps[gp] += g[:h]; gaps[gp + 1] += g[h:]
                    else:
                        spill.append((g, []))
                    if pr < 8:
                        gs = 8 + 7 * pr
                        while any(t.startswith('buffer') for t in front[gs]): gs += 1
                        front[gs] += self.kv_store(pr)
            emit_gaps(b, ms, [front[g] + gaps[g] for g in range(64)])
            if last:
                assert not carry
                b('s_nop 7')
                for g, st in spill:
                    for t in g + st: b(t)
        if a == 0: b('s_branch L_q')
        return b

    def spin(self, load, check, back):
        lab = self.lab('spin'); b = self.blk(lab, tail=True)
        b('%s:\ns_mov_b32 s%d, 0x4000' % (lab, sSpin))
        b('%s_l:\ns_sleep 4' % lab)
        for t in load: b(t)
        b('s_waitcnt vmcnt(0)')
        for t in check: b(t)
        b('s_cbranch_scc1 %s' % back)
        b('s_sub_u32 s%d, s%d, 1\ns_cmp_lg_u32 s%d, 0\ns_cbranch_scc1 %s_l\ns_branch %s' % (sSpin, sSpin, sSpin, lab, back))
        return lab
    def flag_addr(self, vdst, kind, base_expr, nlanes, stride):
        return base_expr + ['s_lshl_b32 s94, s94, 6', 's_add_u32 s94, s94, %d' % (FLAG + kind * 16384),
                'v_mul_u32_u24 v%d, %d, v%d' % (vdst, stride * 4, vL16), 'v_add_u32 v%d, s94, v%d' % (vdst, vdst),
                'v_cmp_gt_u32 vcc, %d, v%d' % (nlanes * 16, vL16), 'v_mov_b32 v%d, %d' % (vM2, OOB), 's_nop 0',
                'v_cndmask_b32 v%d, v%d, v%d, vcc' % (vdst, vM2, vdst)]
    def poll(self, vaddr, vdat, nlanes):
        load = ['buffer_load_dword v%d, v%d, %s, 0 offen sc1' % (vdat, vaddr, srd(R_WS))]
        chk = ['v_cmp_eq_u32 vcc, 1, v%d' % vdat, 's_and_b32 s94, vcc_lo, %d' % ((1 << nlanes) - 1), 's_cmp_eq_u32 s94, %d' % ((1 << nlanes) - 1)]
        back = self.lab('back')
        lab = self.spin(load, chk, back)
        return load, chk + ['s_cbranch_scc0 %s' % lab, back + ':']
    def publish(self, kind, release):
        out = []
        if release:
            lab = self.lab('rel'); back = self.lab('back')
            b = self.blk(lab, tail=True)
            b('%s:\nbuffer_wbl2 sc1\ns_waitcnt vmcnt(0)\ns_branch %s' % (lab, back))
            out += ['s_cmp_eq_u32 s%d, 0' % sLocal, 's_cbranch_scc1 %s' % lab, back + ':']
        out += ['s_lshl_b32 s94, s2, 6', 's_add_u32 s94, s94, %d' % (FLAG + kind * 16384), 's_cmp_eq_u32 s%d, 0' % sW,
                's_cselect_b32 s94, s94, 0x8000000', 'v_lshl_add_u32 v%d, v%d, 21, s94' % (vM, vL16), 'v_mov_b32 v%d, 1' % vM2,
                'buffer_store_dword v%d, v%d, %s, 0 offen sc1' % (vM2, vM, srd(R_WS))]
        return out
    def acquire(self):
        lab = self.lab('acq'); back = self.lab('back')
        b = self.blk(lab, tail=True)
        b('%s:\nbuffer_inv sc1\ns_waitcnt vmcnt(0)\ns_branch %s' % (lab, back))
        return ['s_cmp_eq_u32 s%d, 0' % sLocal, 's_cbranch_scc1 %s' % lab, back + ':']

    def at_dma(self, kpart=True, vpart=True, m0=None):
        out = []
        def m0set(off):
            if m0 is None: return ['s_add_u32 m0, s%d, %d' % (sOld, off)]
            return ['s_add_u32 m0, s%d, %d' % (sMW, m0 + off)]
        if kpart:
            out.append(m0set(0))
            for i in range(4):
                out.append(['buffer_load_dwordx4 v%d, %s, s%d offen offset:%d sc1 lds @kv' % (vL16, srd(R_WS), sK, i * 1024)])
            out[-1].append('s_add_u32 s%d, s%d, 16384' % (sK, sK))
        if vpart:
            out.append(m0set(16384))
            for i in range(4):
                out.append(['buffer_load_dwordx4 v%d, %s, s%d offen offset:%d sc1 lds @kv' % (vL16, srd(R_WS), sV, i * 1024)])
            out[-1].append('s_add_u32 s%d, s%d, 16384' % (sV, sV))
        return self.merge_m0(out)
    def at_rotate(self):
        return (['s_add_u32 s%d, s%d, s%d' % (sOld, sR, sMW), 's_add_u32 s%d, s%d, 32768' % (sR, sR),
                 's_cmp_eq_u32 s%d, 98304' % sR, 's_cselect_b32 s%d, 0, s%d' % (sR, sR)],
                ['v_add_u32 v%d, s%d, v%d' % (vRd, sR, vL16)])

    def start_check(self):
        chk = ['v_and_b32 v%d, 0x80808080, v%d' % (vM, vT), 'v_cmp_ne_u32 vcc, 0x80808080, v%d' % vM, 's_cmp_eq_u64 vcc, 0']
        back = self.lab('back')
        lab = self.spin(['v_lshrrev_b32 v%d, 2, v%d' % (vT, vL16), 'buffer_load_dword v%d, v%d, %s, 0 offen sc1' % (vT, vT, srd(R_DBG))], chk, back)
        return [chk + ['s_cbranch_scc0 %s' % lab, back + ':'],
                ['s_and_b32 s94, s%d, 3' % sX, 's_lshl_b32 s94, s94, 3', 'v_bfe_u32 v%d, v%d, s94, 8' % (vM, vT)],
                ['s_lshr_b32 s94, s%d, 2' % sX, 's_lshl_b32 s94, 0x55555555, s94', 'v_cmp_ne_u32 vcc, s%d, v%d' % (sXcc, vM)],
                ['s_or_b32 s95, vcc_lo, vcc_hi', 's_and_b32 s95, s95, s94', 's_cselect_b32 s%d, 0, 1' % sLocal]]
    def token_ops(self):
        K = 240
        out = ['v_max3_u32 v%d, v%d, v%d, v%d' % (K, K, K + 1, K + 2)]
        for i in range(K + 3, K + 15, 2): out.append('v_max3_u32 v%d, v%d, v%d, v%d' % (K, K, i, i + 1))
        out.append('v_max_u32 v%d, v%d, v%d' % (K, K, K + 15))
        for dpp in ('quad_perm:[1,0,3,2]', 'quad_perm:[2,3,0,1]', 'row_half_mirror', 'row_mirror'):
            out.append('s_nop 0\nv_max_u32_dpp v%d, v%d, v%d %s row_mask:0xf bank_mask:0xf' % (K, K, K, dpp))
        for sw in ('v_permlane32_swap_b32', 'v_permlane16_swap_b32'):
            out += ['v_mov_b32 v%d, v%d' % (K + 1, K), 's_nop 0\n%s v%d, v%d' % (sw, K, K + 1), 'v_max_u32 v%d, v%d, v%d' % (K, K, K + 1)]
        out += ['v_and_b32 v%d, 0x7ff, v%d' % (K + 1, K), 'v_sub_u32 v%d, 0x7ff, v%d' % (K + 1, K + 1), 'v_and_b32 v%d, 0xfffff800, v%d' % (K, K),
                'v_readfirstlane_b32 s%d, v%d' % (sTok, K + 1), 'v_not_b32 v%d, v%d' % (K + 2, K), 'v_ashrrev_i32 v%d, 31, v%d' % (K + 2, K + 2),
                'v_or_b32 v%d, 0x80000000, v%d' % (K + 2, K + 2), 'v_xor_b32 v%d, v%d, v%d' % (K, K, K + 2),
                'v_mul_f32 v%d, 0xbfb8aa3b, v%d' % (K, K), 'v_exp_f32 v%d, v%d' % (K, K), 'v_add_f32 v%d, 1.0, v%d' % (K, K),
                'v_rcp_f32 v%d, v%d' % (K, K), 'v_readfirstlane_b32 s%d, v%d' % (sRsel, K)]
        return out
    @staticmethod
    def ffw(m, i):
        n = 9 * m + i
        return ('a', 192 + 4 * n) if n < 16 else ('v', 240 + 4 * (n - 16))
    @staticmethod
    def ffd(i): return ('a', 224 + 4 * i) if i < 8 else ('v', 240 + 4 * (i - 8))
    FS = LDS_BYTES - 1024
    def ffn_scalars(self):
        return ['s_sub_u32 s%d, s2, 112' % sA, 's_lshr_b32 s%d, s%d, 3' % (sA, sA), 's_mul_i32 s%d, s%d, 18' % (sB, sX),
                's_add_u32 s%d, s%d, s%d' % (sA, sA, sB), 's_lshl_b32 s%d, s%d, 6' % (sA, sA),
                's_cmp_ge_u32 s2, %d\ns_cselect_b32 s%d, s%d, 0x40000000' % (self.ffwg, sFf, sA)]
    def ffn_loads(self):
        pre = ['v_lshrrev_b32 v9, 6, v%d' % vL16, 's_mul_i32 s94, s%d, 144' % sW, 'v_add_u32 v9, s94, v9', 'v_and_b32 v10, 0x30, v%d' % vL16,
               'v_mul_u32_u24 v11, 0x2400, v9', 'v_add_u32 v10, v10, v11', 'v_lshlrev_b32 v9, 1, v9', 's_mul_i32 s%d, s%d, 1152' % (sA, sTok),
               's_mov_b32 s%d, s%d' % (sB, sFf)]
        out = []
        for i in range(9):
            out.append(['buffer_load_dwordx4 %s, v10, %s, s%d offen @ff' % (rr(self.ffw(0, i)), srd(R_WG), sB)])
            out.append(['buffer_load_dwordx4 %s, v10, %s, s%d offen @ff' % (rr(self.ffw(1, i)), srd(R_WU), sB), 's_add_u32 s%d, s%d, %d' % (sB, sB, 16 * 9216)])
            out.append(['buffer_load_ushort v%d, v9, %s, s%d offen offset:%d @ff' % (i, srd(R_X), sA, 32 * i)])
        return pre, out
    def ffn_a(self, b):
        lab = self.lab('ffa'); back = self.lab('back')
        b('s_cmp_ge_u32 s2, %d\ns_cbranch_scc1 %s\n%s:' % (self.ffwg, lab, back))
        t = self.blk(lab, tail=True)
        t(lab + ':\ns_waitcnt vmcnt(16)')
        A = vU
        for e in range(16): t('v_mov_b32 v%d, 0' % (A + e))
        for i in range(9):
            t('v_lshlrev_b32 v9, 16, v%d' % i)
            for m in range(2):
                w = self.ffw(m, i)
                if w[0] == 'a':
                    for d in range(4): t('v_accvgpr_read_b32 v%d, a%d' % (248 + 4 * m + d, w[1] + d))
                    w = ('v', 248 + 4 * m)
                for d in range(4):
                    t('v_dot2_f32_bf16 v%d, v%d, v%d, v%d' % (A + 8 * m + 2 * d, w[1] + d, i, A + 8 * m + 2 * d))
                    t('v_dot2_f32_bf16 v%d, v%d, v9, v%d' % (A + 8 * m + 2 * d + 1, w[1] + d, A + 8 * m + 2 * d + 1))
        t('s_mul_i32 s%d, s%d, 576\ns_mul_i32 s94, s%d, 288\ns_add_u32 s%d, s%d, s94' % (sA, sFf, sW, sA, sA))
        for i in range(11):
            t('buffer_load_dwordx4 %s, v%d, %s, s%d offen\ns_add_u32 s%d, s%d, 3456' % (rr(self.ffd(i)), vWo[0], srd(R_WD), sA, sA, sA))
        for e in range(8): t('v_permlane32_swap_b32 v%d, v%d' % (A + e, A + 8 + e))
        for e in range(8): t('v_add_f32 v%d, v%d, v%d' % (A + e, A + e, A + 8 + e))
        t('s_nop 0')
        for e in range(4): t('v_permlane16_swap_b32 v%d, v%d' % (A + e, A + 4 + e))
        for e in range(4): t('v_add_f32 v%d, v%d, v%d' % (A + e, A + e, A + 4 + e))
        for dpp in ('row_ror:4', 'row_ror:8'):
            for e in range(4): t('v_add_f32_dpp v%d, v%d, v%d %s row_mask:0xf bank_mask:0xf' % (A + e, A + e, A + e, dpp))
        t('v_lshrrev_b32 v9, 9, v%d\nv_lshlrev_b32 v9, 7, v9\nv_bfe_u32 v10, v%d, 8, 1\nv_lshl_add_u32 v9, v10, 4, v9' % (vL16, vL16))
        t('v_and_b32 v10, 0x30, v%d\nv_lshl_add_u32 v9, v10, 1, v9\ns_lshl_b32 s94, s%d, 8\ns_add_u32 s94, s94, %d\nv_add_u32 v9, s94, v9' % (vL16, sW, self.FS))
        t('ds_write_b128 v9, %s\ns_waitcnt lgkmcnt(0)\ns_branch %s' % (v4(A), back))
    def ffn_b(self, b):
        lab = self.lab('ffb'); back = self.lab('back')
        b('s_cmp_ge_u32 s2, %d\ns_cbranch_scc1 %s\n%s:' % (self.ffwg, lab, back))
        t = self.blk(lab, tail=True)
        t(lab + ':')
        A = vU
        t('v_bfe_u32 v9, v%d, 4, 5\nv_lshlrev_b32 v9, 2, v9\nv_add_u32 v9, %d, v9' % (vL16, self.FS))
        for wv in range(4): t('ds_read_b32 v%d, v9 offset:%d\nds_read_b32 v%d, v9 offset:%d' % (wv, 256 * wv, 4 + wv, 256 * wv + 128))
        t('v_lshrrev_b32 v10, 4, v%d\nv_mul_u32_u24 v11, 0xe39, v10\nv_lshrrev_b32 v11, 16, v11\nv_cmp_gt_u32 vcc, 54, v10\nv_mov_b32 v12, 32' % vL16)
        t('v_mul_u32_u24 v13, 18, v11\nv_cndmask_b32 v11, v12, v11, vcc\nv_sub_u32 v13, v10, v13\nv_lshlrev_b32 v11, 2, v11')
        for e in range(8): t('v_mov_b32 v%d, 0' % (A + e))
        t('s_waitcnt lgkmcnt(0)')
        t('v_add_f32 v0, v0, v1\nv_add_f32 v2, v2, v3\nv_add_f32 v4, v4, v5\nv_add_f32 v6, v6, v7\nv_add_f32 v0, v0, v2\nv_add_f32 v4, v4, v6')
        t('v_mul_f32 v1, 0xbfb8aa3b, v0\nv_exp_f32 v1, v1\nv_cmp_gt_u32 vcc, 32, v10\nv_add_f32 v1, 1.0, v1\nv_rcp_f32 v1, v1\nv_mul_f32 v0, v0, v4')
        t('v_mul_f32 v0, v0, v1\nv_cvt_pk_bf16_f32 v0, v0, v0\nv_and_b32 v0, 0xffff, v0\nv_cndmask_b32 v0, 0, v0, vcc')
        H = A + 8
        for i in range(8): t('ds_bpermute_b32 v%d, v11, v0 offset:%d' % (1 + i, 12 * i))
        for i in range(8, 11): t('ds_bpermute_b32 v%d, v11, v0 offset:%d' % (H + i - 8, 12 * i))
        t('s_waitcnt lgkmcnt(0)')
        for i in range(11):
            h = 1 + i if i < 8 else H + i - 8
            t('v_lshlrev_b32 v9, 16, v%d' % h)
            w = self.ffd(i)
            if w[0] == 'a':
                for d in range(4): t('v_accvgpr_read_b32 v%d, a%d' % (252 + d, w[1] + d))
                w = ('v', 252)
            for d in range(4):
                t('v_dot2_f32_bf16 v%d, v%d, v%d, v%d' % (A + 2 * d, w[1] + d, h, A + 2 * d))
                t('v_dot2_f32_bf16 v%d, v%d, v9, v%d' % (A + 2 * d + 1, w[1] + d, A + 2 * d + 1))
        t('v_lshlrev_b32 v11, 2, v10\ns_lshl_b32 s94, s%d, 12\ns_mul_i32 s95, s%d, 576\ns_add_u32 s94, s94, s95\ns_add_u32 s%d, s94, %d' % (sX, sW, sA, YACC))
        for e in range(8): t('ds_bpermute_b32 v%d, v11, v%d offset:72\nds_bpermute_b32 v%d, v11, v%d offset:144' % (e, A + e, 240 + e, A + e))
        t('v_cmp_gt_u32 vcc, 18, v10\nv_lshlrev_b32 v13, 5, v10\nv_mov_b32 v12, %d\nv_cndmask_b32 v13, v12, v13, vcc\ns_waitcnt lgkmcnt(0)' % OOB)
        for e in range(8): t('v_add_f32 v%d, v%d, v%d' % (e, e, 240 + e))
        for e in range(8): t('v_add_f32 v%d, v%d, v%d\nbuffer_atomic_add_f32 v%d, v13, %s, s%d offen offset:%d' % (e, e, A + e, e, srd(R_WS), sA, 4 * e))
        t('s_branch ' + back)

    def q_phase(self):
        b = self.blk('q')
        b('L_q:')
        b.autowait()
        for t in self.stamp(2): b(t)
        fill = []
        fill += ['v_add_u32 v%d, 0x10000, v%d' % (vRX2[0], vRC[0]), 'v_add_u32 v%d, 0x10000, v%d' % (vRX2[1], vRC[1])]
        late = ['v_accvgpr_write_b32 a%d, 0' % i for i in range(128)]
        late += ['v_mov_b32 v%d, 0' % (vLs + i) for i in range(4)] + ['v_mov_b32 v%d, 0' % (vTs + i) for i in range(4)]
        late += ['v_bfe_u32 v%d, v%d, 4, 4' % (vU, vL16), 'v_lshrrev_b32 v%d, 8, v%d' % (vU + 1, vL16),
                 'v_lshlrev_b32 v%d, 2, v%d' % (vU + 1, vU + 1), 'v_sub_u32 v%d, v%d, v%d' % (vU, vU, vU + 1),
                 'v_mov_b32 v%d, 0x%x' % (vU + 1, BIGN)]
        for r in range(4):
            late += ['v_cmp_gt_i32 vcc, %d, v%d' % (r, vU), 's_nop 1', 'v_cndmask_b32 v%d, 0, v%d, vcc' % (vB + r, vU + 1)]
        late += ['v_lshrrev_b32 v%d, 4, v%d' % (vU, vL16)]
        for i in range(9):
            late += ['v_add_u32 v%d, %d, v%d' % (vU + 1, 64 * i, vU), 'v_mul_u32_u24 v%d, 0xe39, v%d' % (vU + 2, vU + 1),
                     'v_lshrrev_b32 v%d, 16, v%d' % (vU + 2, vU + 2), 'v_mul_u32_u24 v%d, 0x360, v%d' % (vU + 2, vU + 2),
                     'v_lshl_add_u32 v%d, v%d, 4, v%d' % (vWo[i], vU + 1, vU + 2)]
            if i & 3: late += ['v_subrev_u32 v%d, %d, v%d' % (vWo[i], (i & 3) * 1024, vWo[i])]
        late += ['v_lshrrev_b32 v%d, 2, v%d' % (vU + 1, vU), 'v_mul_u32_u24 v%d, 0x120, v%d' % (vU + 1, vU + 1),
                 'v_and_b32 v%d, 3, v%d' % (vU + 2, vU), 'v_lshl_add_u32 v%d, v%d, 3, v%d' % (vRO[1], vU + 2, vU + 1),
                 'v_add_u32 v%d, %d, v%d' % (vRO[0], WK0, vRO[1]), 'v_add_u32 v%d, %d, v%d' % (vRO[2], 7 * 9216, vRO[1])]
        carry = []
        osc = self.o_scalars() + self.ffn_scalars()
        assert len(osc) <= 90
        for k in range(18):
            s = k >> 1; last = k == 17
            order = [(i, qt) for i in range(8) for qt in range(4)]
            if last: order = [(i, qt) for qt in range(4) for i in range(8)]
            ms = [mfma(qacc(i, qt), self.qwfrag(k, i), self.qxfrag(k, qt), '0' if k == 0 else qacc(i, qt)) for (i, qt) in order]
            gaps = [[] for _ in range(32)]
            pos = 0
            if k & 1:
                w = 'WAIT q%d:0 lgkm0' % (s + 1) if s < 8 else 'WAIT kv:1 lgkm0'
                if k == 3: w += ' kvs0:0'
                if k == 15: w += ' kvs1:0'
                gaps[0] += self.stamp('qa%d' % s) + [w, 's_barrier'] + self.stamp('qb%d' % s)
                pos = 1
                if k == 3: gaps[1] += self.publish(F_KV, True); pos = 2
                if k == 15: gaps[1] += self.publish(F_KV2, True); pos = 2
                if s <= 5: carry = self.merge_m0(self.q_dma(s + 3)) + [self.kv_dma_adv()[:2], self.kv_dma_adv()[2:]]
                elif s == 6: carry = self.at_dma(True, False, XC)
                elif s == 7: carry = self.at_dma(True, True, XA)
                else: carry = self.at_dma(True, True, XB)
            if k == 0:
                for i, grp in enumerate(self.start_check()): gaps[22 + i] += grp
            if k == 6:
                gaps[27] += ['s_mov_b32 s%d, %d' % (sA, KEYB)]
                for i in range(4): gaps[28 + i] = ['buffer_load_dwordx4 %s, v%d, %s, s%d offen offset:%d sc1' % (v4(240 + 4 * i), vL16, srd(R_WS), sA, 1024 * i)] + gaps[28 + i]
            if k == 10: late[0:0] = self.token_ops()
            if k == 8:
                fa = self.flag_addr(vPoll, F_KV, ['s_and_b32 s94, s2, 31'], 8, 32)
                gaps[28] += fa[:5]; gaps[29] += fa[5:]
                self.kvpoll = self.poll(vPoll, vT, 8)
                gaps[30] = self.kvpoll[0] + gaps[30]
            if k == 12:
                gaps[26] += self.kvpoll[1] + self.acquire()
                gaps[28] += ['s_lshl_b32 s%d, s%d, 19' % (sK, sH), 's_add_u32 s%d, s%d, s%d' % (sK, sK, sMW)]
                gaps[29] += ['s_add_u32 s%d, s%d, %d' % (sV, sK, VBUF - KBUF), 's_mov_b32 s%d, %d' % (sR, XC)]
                gaps[30] += ['v_add_u32 v%d, %d, v%d' % (vRd, XC, vL16)]
            rd = self.q_reads(k + 1) if not last else [self.k_read(n, n >> 2, n & 3) for n in range(8)]
            g = pos; nd = 7 if (k & 1) else 99
            while rd or (carry and nd):
                if carry and nd and (g % 4 == 1 or not rd):
                    gaps[g] = carry.pop(0) + gaps[g]; nd -= 1
                else:
                    gaps[g].insert(0, rd.pop(0))
                g += 1
            assert g <= 30, (k, g)
            if k < 12 and 'nost' not in self.opt:
                for n, g in enumerate((11, 27)): gaps[g] = self.kv_store(8 + 2 * k + n) + gaps[g]
            if last:
                self.q_carry = carry
            if k in (2, 4, 5):
                for g in range(2, 32):
                    if osc: gaps[g].insert(0, osc.pop(0))
            src = fill if k < 2 else (late if k >= 5 else [])
            if not last:
                for g in range(1, 32):
                    if src and not any(t.startswith('buffer') or t.startswith('s_c') or t.startswith('v_') for t in gaps[g]):
                        t = src.pop(0)
                        gaps[g].append(t)
                        if t.startswith('v_cmp'):
                            gaps[g] += [src.pop(0), src.pop(0)]
            else:
                assert not late and not fill
                ep = []
                self.q_ep = []
                for qt in range(4):
                    for ds in range(4):
                        x, y = qacc(2 * ds, qt)[1], qacc(2 * ds + 1, qt)[1]
                        ops = ['v_mul_f32 v%d, 0x%x, v%d' % (r, QSCALE, r) for r in list(range(x, x + 4)) + list(range(y, y + 4))]
                        ops += ['v_cvt_pk_bf16_f32 v%d, v%d, v%d' % (x, x, x + 1), 'v_cvt_pk_bf16_f32 v%d, v%d, v%d' % (x + 1, x + 2, x + 3),
                                'v_cvt_pk_bf16_f32 v%d, v%d, v%d' % (x + 2, y, y + 1), 'v_cvt_pk_bf16_f32 v%d, v%d, v%d' % (x + 3, y + 2, y + 3)]
                        ep += [(qt * 8 + 2 * ds + 1, t) for t in ops]
                for g in range(32):
                    n = 3
                    while n and ep and ep[0][0] + 4 <= g:
                        gaps[g].append(ep.pop(0)[1]); n -= 1
                self.q_ep = [t for (_, t) in ep]
            emit_gaps(b, ms, gaps)
        return b

    def k_read(self, n, kt, ds): return 'ds_read_b128 %s, v%d offset:%d' % (rr(fifo(n)), vRd, (kt * 4 + ds) * 1024)
    def v_read(self, n, ks, dt): return 'ds_read_b128 %s, v%d offset:%d' % (rr(fifo(n)), vRd, 16384 + (ks * 8 + dt) * 1024)

    def qk_step(self, mode, par, half, n0, masked, first=False):
        ms, fr, inits = [], [], []
        if mode == 'd':
            tiles = [(kt, qt) for kt in range(2) for qt in (2, 3, 0, 1)]
            if first: tiles = [(kt, qt) for qt in range(4) for kt in range(2)]
            nk = 2
        else:
            tiles = [(kt, qt) for kt in range(4) for qt in (2, 3)]; nk = 4
        use = {}
        for (kt, qt) in tiles:
            S = stile(mode, par, kt, qt)
            m = masked and (qt < 2 if mode == 'd' else True)
            if m:
                o = (qt & 1) - kt + 3
                ops = ['v_mov_b32 v%d, s%d' % (vM, sNone[o])] if first else ['v_add_f32 v%d, s%d, v%d' % (vM, sNone[o], negm(qt)[1])]
                ops += ['v_fma_f32 v%d, v%d, s%d, v%d' % (S[1] + r, vB + r, sTri[o], vM) for r in range(4)]
                inits.append((len(ms), ops))
            for ds in range(4):
                c = S if (ds or m) else ('0' if first else negm(qt))
                use.setdefault((kt, ds), []).append(len(ms))
                ms.append(mfma(S, fifo(n0 + kt * 4 + ds), qfrag(qt, ds), c))
        for kt in range(nk):
            for ds in range(4):
                fr.append((self.k_read(n0 + kt * 4 + ds, (2 * half if mode == 'd' else 0) + kt, ds), use[(kt, ds)][0], use[(kt, ds)][-1]))
        return ms, fr, inits
    def pv_step(self, mode, par, half, n0):
        ms, fr = [], []
        for dt in range(8):
            if mode == 'd':
                fr.append((self.v_read(n0 + dt, half, dt), len(ms), len(ms) + 3))
                for qt in range(4):
                    ms.append(mfma(oacc(dt, qt), fifo(n0 + dt), pfrag('d', par, qt, 0), oacc(dt, qt)))
            else:
                for ks in range(2): fr.append((self.v_read(n0 + 2 * dt + ks, ks, dt), len(ms) + ks, len(ms) + 2 + ks))
                for qt in (2, 3):
                    for ks in range(2):
                        ms.append(mfma(oacc(dt, qt), fifo(n0 + 2 * dt + ks), pfrag('s', par, qt, ks), oacc(dt, qt)))
        return ms, fr, []
    def pairs(self, mode, par):
        out = []
        for qt in (range(4) if mode == 'd' else (2, 3)):
            first = True
            for ks in range(1 if mode == 'd' else 2):
                P = pfrag(mode, par, qt, ks)[1]
                for h in range(2):
                    S = stile(mode, par, 2 * ks + h, qt)[1]
                    for e in range(2):
                        out.append((qt, first, S + 2 * e, P + 2 * h + e)); first = False
        return out
    def softmax(self, mode, par):
        g = [[] for _ in range(64)]
        for p, (qt, first, S, P) in enumerate(self.pairs(mode, par)):
            g[4 * p].append('v_exp_f32 v%d, v%d' % (vE[0], S))
            g[4 * p + 1].append('v_exp_f32 v%d, v%d' % (vE[1], S + 1))
            if first:
                g[4 * p + 2] += ['v_add_f32 v%d, v%d, v%d' % (vLs + qt, vLs + qt, vTs + qt), 'v_add_f32 v%d, v%d, v%d' % (vTs + qt, vE[0], vE[1])]
            else:
                g[4 * p + 2] += ['v_add_f32 v%d, v%d, v%d' % (vTs + qt, vTs + qt, vE[0]), 'v_add_f32 v%d, v%d, v%d' % (vTs + qt, vTs + qt, vE[1])]
            g[4 * p + 3].append('v_cvt_pk_bf16_f32 v%d, v%d, v%d' % (P, vE[0], vE[1]))
        return g
    def check(self, g, mode, par, nxt):
        if mode == 'd':
            g[51].append('v_max3_f32 v%d, v%d, v%d, v%d' % (vM2, vTs, vTs + 1, vTs + 2))
            head = ['v_max_f32 v%d, v%d, v%d' % (vM2, vM2, vTs + 3)]
        else:
            head = ['v_max_f32 v%d, v%d, v%d' % (vM2, vTs + 2, vTs + 3)]
        back = self.lab('back'); tr = self.lab('tr')
        t = self.blk(tr, tail=True)
        t('%s:\ns_call_b64 s[%d:%d], %s\ns_branch %s' % (tr, sRet, sRet + 1, self.rare(mode, par, nxt), back))
        g[63] = head + ['v_cmp_lt_f32 vcc, 0x%x, v%d' % (THR, vM2)] + g[63] + ['s_cbranch_vccnz %s' % tr, back + ':']
    def rowmax(self, b, regs, dst, t):
        b('v_max3_f32 v%d, v%d, v%d, v%d' % (dst, regs[0], regs[1], regs[2]))
        regs = regs[3:]
        while len(regs) >= 2:
            b('v_max3_f32 v%d, v%d, v%d, v%d' % (dst, dst, regs[0], regs[1])); regs = regs[2:]
        if regs: b('v_max_f32 v%d, v%d, v%d' % (dst, dst, regs[0]))
        self.xlane(b, 'v_max_f32', dst, t)
    def xlane(self, b, op, dst, t):
        for sw in ('v_permlane32_swap_b32', 'v_permlane16_swap_b32'):
            b('v_mov_b32 v%d, v%d\ns_nop 1\n%s v%d, v%d\n%s v%d, v%d, v%d' % (t, dst, sw, dst, t, op, dst, dst, t))
    def sregs(self, mode, par, qt):
        return [stile(mode, par, kt, qt)[1] + r for kt in range(2 if mode == 'd' else 4) for r in range(4)]
    def rare(self, mode, par, nxt):
        key = 'L_rare_%s%d%s' % (mode, par, nxt or 'n')
        if key in self.rares: return key
        self.rares[key] = b = self.blk(key, tail=True)
        b(key + ':\ns_nop 7\ns_nop 1')
        d, f, t = vU, vU + 1, vU + 2
        for qt in (range(4) if mode == 'd' else (2, 3)):
            sr = self.sregs(mode, par, qt)
            self.rowmax(b, sr, d, t)
            b('v_max_f32 v%d, 0, v%d\nv_sub_f32 v%d, 0, v%d\nv_exp_f32 v%d, v%d' % (d, d, f, d, f, f))
            for r in range(4): b('v_sub_f32 v%d, v%d, v%d' % (negm(qt)[1] + r, negm(qt)[1] + r, d))
            b('v_mul_f32 v%d, v%d, v%d' % (vLs + qt, vLs + qt, f))
            for dt in range(8):
                o = oacc(dt, qt)[1]
                for r in range(4): b('v_accvgpr_read_b32 v%d, a%d' % (t + r, o + r))
                for r in range(4): b('v_mul_f32 v%d, v%d, v%d' % (t + r, t + r, f))
                for r in range(4): b('v_accvgpr_write_b32 a%d, v%d' % (o + r, t + r))
            for r in sr: b('v_sub_f32 v%d, v%d, v%d' % (r, r, d))
            if nxt and (nxt == 'd' or qt >= 2):
                for r in self.sregs(nxt, par ^ 1, qt): b('v_sub_f32 v%d, v%d, v%d' % (r, r, d))
        for (qt, first, S, P) in self.pairs(mode, par):
            b('v_exp_f32 v%d, v%d\nv_exp_f32 v%d, v%d\ns_nop 0' % (vE[0], S, vE[1], S + 1))
            if first: b('v_add_f32 v%d, v%d, v%d' % (vTs + qt, vE[0], vE[1]))
            else: b('v_add_f32 v%d, v%d, v%d\nv_add_f32 v%d, v%d, v%d' % (vTs + qt, vTs + qt, vE[0], vTs + qt, vTs + qt, vE[1]))
            b('v_cvt_pk_bf16_f32 v%d, v%d, v%d' % (P, vE[0], vE[1]))
        b('s_nop 1\ns_setpc_b64 s[%d:%d]' % (sRet, sRet + 1))
        return key
    def mask_scalars(self, offs):
        out = []
        for o in offs:
            out += [['s_cmp_eq_i32 s%d, %d' % (sD, -o), 's_cselect_b32 s%d, 1.0, 0' % sTri[o + 3]],
                    ['s_cmp_lt_i32 s%d, %d' % (sD, -o), 's_cselect_b32 s%d, 0x%x, 0' % (sNone[o + 3], BIGN)]]
        return out

    def at_block(self, name, steps, sm, nxt_reads, bar, dma, extra=None, pre=None, nl_in=6, wait='WAIT kv:1 lgkm0', post_bar=None, dma_all=False):
        b = self.blk(name)
        ms, fr, inits = [], [], []
        for (m, f, ini) in steps:
            fr += [(t, u0 + len(ms), u1 + len(ms)) for (t, u0, u1) in f]
            inits += [(u + len(ms), ops) for (u, ops) in ini]
            ms += m
        G = len(ms)
        gaps = [list(x) for x in sm]
        assert len(gaps) == G
        front = [[] for _ in range(G)]
        def vcost(g): return sum(8 if t.startswith('v_exp') else 4 for t in gaps[g] if t.startswith('v_'))
        def busy(g): return any(not t.startswith('s_') and not t.startswith('WAIT') for t in front[g])
        if bar is not None:
            sc, vc = self.at_rotate()
            for i, t in enumerate(sc[:2]): front[bar - 3 + i].insert(0, t)
            front[bar - 1] = sc[2:] + front[bar - 1]
            gaps[bar - 1] = gaps[bar - 1] + vc
            front[bar] = [wait, 's_barrier'] + (post_bar or []) + front[bar]
            step = (G - 1 - bar) // (len(nxt_reads) - 1)
            for i, t in enumerate(nxt_reads):
                n = len(fr) + i
                g = G - 1 - step * (len(nxt_reads) - 1 - i)
                assert g >= bar and (n < 16 or g >= fr[n - 16][2]), (name, n)
                front[g].append(t)
        real = [x for x in dma if not x[0].startswith('s_')]
        lim = min(bar - 2 if (bar is not None and not dma_all) else G, int(self.opt.get('atsp', 8)) * len(real))
        prev = -1; i = 0
        for grp in dma:
            if grp[0].startswith('s_'):
                front[prev + 1] += grp; prev += 1; continue
            tgt = 2 + i * (lim - 2) // len(real); i += 1
            x = min([x for x in range(prev + 1, G) if x % 2 == 0 and not busy(x)], key=lambda x: abs(x - tgt) + (0 if x % 4 == 2 else 0.6))
            front[x] += grp; prev = x
        own = fr[nl_in:]
        LAT = int(self.opt.get('lat', 6))
        lim = (bar - 4) if bar is not None else G - 1
        INF = 1e9
        n_own = len(own)
        best = [[INF] * (G + 2) for _ in range(n_own + 1)]; take = [[False] * (G + 2) for _ in range(n_own + 1)]
        for g in range(G + 2): best[n_own][g] = 0
        for i in range(n_own - 1, -1, -1):
            t, u0, u1 = own[i]; n = i + nl_in
            free = max(fr[n - 16][2] if n >= 16 else 0, 0); dl = min(u0 - LAT, lim)
            for g in range(G - 1, -1, -1):
                best[i][g] = best[i][g + 1]
                if free <= g <= dl and not busy(g):
                    c = max(0, vcost(g) + 4 - 8) - max(0, vcost(g) - 8) + 0.01 * g + (0 if g % 2 else 1) + best[i + 1][g + 1]
                    if c <= best[i][g]: best[i][g] = c; take[i][g] = True
        assert best[0][0] < INF, name
        g = 0
        for i in range(n_own):
            while not take[i][g]: g += 1
            front[g].append(own[i][0]); g += 1
        prel = list(pre or [])
        for (u, ops) in inits:
            if u < 4: prel += ops
            else:
                gaps[u - 4] += ops[:2]; gaps[u - 3] += ops[2:3]; gaps[u - 2] += ops[3:]
        if prel and inits and inits[0][0] < 4: prel.append('s_nop 1')
        for (g, ops) in (extra or []):
            if ops[-1].startswith('buffer'): front[g] = front[g] + ops
            elif ops[0].startswith('s_') and not ops[0].startswith('s_cbranch'): front[g] = ops + front[g]
            else: gaps[g] = gaps[g] + ops
        if name in ('L_dp', 'L_sp', 'L_sp1'):
            x = self.opt.get('x', '')
            def keep(t):
                if 'd' in x and t.startswith('buffer_load'): return False
                if 'b' in x and t.startswith('s_barrier'): return False
                if 'w' in x and t.startswith('WAIT'): return False
                if 'c' in x and (t.startswith('s_cbranch_vccnz') or t.startswith('v_cmp_lt_f32') or t.startswith('v_max')): return False
                if 'r' in x and t.startswith('ds_read'): return False
                if 'e' in x and t.startswith('v_exp'): return False
                if 'v' in x and t.startswith('v_') and not t.startswith('v_cmp'): return False
                return True
            front = [[t for t in f if keep(t)] for f in front]; gaps = [[t for t in f if keep(t)] for f in gaps]
        b(name + ':')
        emit_gaps(b, ms, [front[g] + gaps[g] for g in range(G)], pre=prel)
        return b

    def finalize(self, qts, blk_expr, tag):
        out = [(0, t) for t in blk_expr]
        out += [(0, t) for t in ('s_lshl_b32 s95, s%d, 4' % sH, 's_add_u32 s94, s94, s95', 's_lshl_b32 s94, s94, 15', 's_add_u32 s94, s94, s%d' % sMC,
                                 's_add_u32 s%d, s94, %d' % (sT0, CTXB), 's_add_u32 s%d, s94, %d' % (sT1, CTXB + 4096))]
        A, B = vLs + qts[0], vLs + qts[1]
        out += [(0, 'v_add_f32 v%d, v%d, v%d' % (vLs + qt, vLs + qt, vTs + qt)) for qt in qts]
        for sw in ('v_permlane32_swap_b32', 'v_permlane16_swap_b32'):
            out += [(0, t) for t in ('v_mov_b32 v%d, v%d' % (vU, A), 'v_mov_b32 v%d, v%d' % (vU + 1, B), 's_nop 0\n%s v%d, v%d' % (sw, A, vU),
                                     '%s v%d, v%d' % (sw, B, vU + 1), 'v_add_f32 v%d, v%d, v%d' % (A, A, vU), 'v_add_f32 v%d, v%d, v%d' % (B, B, vU + 1))]
        out += [(0, 'v_rcp_f32 v%d, v%d' % (A, A)), (0, 'v_rcp_f32 v%d, v%d' % (B, B))]
        for ks in range(4):
            for qi, qt in enumerate(qts):
                L = vLs + qt
                t = vU + 8 * qi
                o = oacc(2 * ks, qt)[1]; e = 8 * ks + 12
                out += [(e, 'v_accvgpr_read_b32 v%d, a%d' % (t + r, o + r)) for r in range(8)]
                out += [(e, 'v_mul_f32 v%d, v%d, v%d' % (t + r, t + r, L)) for r in range(8)]
                q = qfrag(qt, ks)[1]
                out += [(e, 'v_cvt_pk_bf16_f32 v%d, v%d, v%d' % (q + r, t + 2 * r, t + 2 * r + 1)) for r in range(4)]
                out.append((e, 'buffer_store_dwordx4 %s, v%d, %s, s%d offen offset:%d @%s' % (v4(q), vL16, srd(R_WS), sT0 + qi, ks * 1024, tag)))
        return out

    def attention(self):
        self.rares = {}
        E = lambda n: [[] for _ in range(n)]
        vnext_d = [self.v_read(n, 0, n) for n in range(6)]
        knext_s = [self.k_read(n, n >> 2, n & 3) for n in range(6)]
        p0 = self.blk('pro0')
        for t in self.stamp(3): p0(t)
        p0('s_lshl_b32 s%d, s%d, 3\ns_lshl_b32 s94, s%d, 1\ns_add_u32 s%d, s%d, s94' % (sD, sJ, sW, sD, sD))
        for g in self.mask_scalars((-1, 0, 1)):
            for t in g: p0(t)
        ms, fr, inits = self.qk_step('d', 0, 0, 0, True, first=True)
        ep = list(self.q_ep)
        lim = len(ep) - 2 * 48 if len(ep) > 2 * 48 else 0
        p0('s_nop 4')
        for t in ep[:lim]: p0(t)
        ep = ep[lim:]
        gaps = E(32)
        carry = list(self.q_carry)
        later = [self.k_read(8 + n, 2 + (n >> 2), n & 3) for n in range(8)]
        pre = inits[0][1] + ['s_nop 1']
        for (u, ops) in inits[1:]: gaps[u - 3] += ops
        for g in range(32):
            if g < 12:
                for _ in range(4):
                    if ep: gaps[g].append(ep.pop(0))
            elif g % 2 == 0 and ep:
                pass
        for g in range(12, 22):
            for _ in range(5):
                if ep: gaps[g].append(ep.pop(0))
        assert not ep
        for g in range(22, 30): gaps[g].insert(0, later.pop(0))
        g = 0
        for grp in carry:
            gaps[g] = grp + gaps[g]; g += 2
        fpre, fld = self.ffn_loads()
        if 'nopfo' not in self.opt:
            pw = ['s_lshl_b32 s94, s%d, 5' % sX, 's_lshr_b32 s95, s2, 3', 's_add_u32 s94, s94, s95', 's_lshl_b32 s94, s94, 2', 's_add_u32 s94, s94, s%d' % sW,
                  's_mul_i32 s94, s94, 4608', 'v_lshlrev_b32 v12, 3, v%d' % vL16, 'v_min_u32 v12, 0x1180, v12',
                  'buffer_load_dword v13, v12, %s, s94 offen @pf' % srd(R_WO)]
            fld.insert(0, pw)
        gaps[30] += fpre[:5]; gaps[31] += fpre[5:] + ['v_add_u32 v%d, 0x4000, v%d' % (vPoll, vPoll)]
        p0.autowait()
        emit_gaps(p0, ms, gaps, pre=pre)
        ld2, chk2 = self.poll(vPoll, vT, 8)
        for t in ld2: p0(t)
        def ff(n):
            for _ in range(n):
                if fld:
                    for t in fld.pop(0): p0(t)
        for qt in range(4):
            sr = self.sregs('d', 0, qt)
            ff(2)
            self.rowmax(p0, sr, vU, vU + 1)
            ff(1)
            for r in range(4): p0('v_sub_f32 v%d, 0, v%d' % (negm(qt)[1] + r, vU))
            for r in sr: p0('v_sub_f32 v%d, v%d, v%d' % (r, r, vU))
        p0('s_sub_u32 s%d, s%d, 2' % (sD, sD))
        for g in self.mask_scalars((-1, 0, 1)):
            for t in g: p0(t)
        sm0 = self.softmax('d', 0)
        for g in range(32):
            for t in sm0[g]: p0(t)
            if g % 4 == 1: p0('s_nop 0')
            if g % 4 == 3: ff(1)
        p0.autowait()
        s1 = self.qk_step('d', 1, 1, 8, True)
        p1 = self.at_block('L_pro1', [s1], sm0[32:], vnext_d, 11, fld, nl_in=8, dma_all=True,
                           extra=[(20, ['s_lshl_b32 s%d, s%d, 1' % (sCnt, sJ)]), (21, ['s_sub_u32 s%d, s%d, 2' % (sD, sD)])],
                           wait='WAIT kv:1 lgkm0')
        p1.autowait()
        for t in self.stamp('p1a'): p1(t)
        for t in chk2 + self.acquire(): p1(t)
        for t in self.stamp('p1b'): p1(t)
        p1('s_cmp_eq_u32 s%d, 0\ns_cbranch_scc1 L_dd_one' % sJ)
        p1('s_sub_u32 s%d, s%d, 1' % (sCnt, sCnt))
        def dual(name, masked):
            w1, w0 = self.softmax('d', 1), self.softmax('d', 0)
            self.check(w1, 'd', 1, 'd'); self.check(w0, 'd', 0, 'd')
            steps = [self.pv_step('d', 0, 0, 0), self.qk_step('d', 0, 0, 8, masked), self.pv_step('d', 1, 1, 16), self.qk_step('d', 1, 1, 24, masked)]
            extra = []
            if masked:
                for base in (8, 72):
                    for i, g in enumerate(self.mask_scalars((-1, 0, 1))): extra.append((base + 2 * i, g))
                    extra.append((base + 14, ['s_sub_u32 s%d, s%d, 2' % (sD, sD)]))
            else:
                extra.append((100, ['s_sub_u32 s%d, s%d, 4' % (sD, sD)]))
            extra.append((120, ['s_sub_u32 s%d, s%d, 1' % (sCnt, sCnt)]))
            return self.at_block(name, steps, w1 + w0, vnext_d, 107, self.at_dma() + (self.wo_dma(0, 'wo0') if masked else []), extra=extra)
        dp = dual('L_dp', False)
        dp('s_cmp_lg_u32 s%d, 0\ns_cbranch_scc1 L_dp' % sCnt)
        dpx = self.blk('dpx'); dpx('s_mov_b32 s%d, 1\nL_dd_one:\ns_add_u32 s%d, s%d, 1' % (sCnt, sCnt, sCnt))
        dd = dual('L_dd', True)
        dd('s_cmp_lg_u32 s%d, 0\ns_cbranch_scc1 L_dd' % sCnt)
        w1, w0s = self.softmax('d', 1), self.softmax('s', 0)
        self.check(w1, 'd', 1, 's')
        steps = [self.pv_step('d', 0, 0, 0), self.qk_step('s', 0, 0, 8, True), self.pv_step('d', 1, 1, 24)]
        extra = [(2, ['s_lshl_b32 s94, s%d, 4' % sJ, 's_sub_u32 s%d, 112, s94' % sD]), (4, ['s_lshl_b32 s94, s%d, 1' % sW, 's_add_u32 s%d, s%d, s94' % (sD, sD)])]
        for i, g in enumerate(self.mask_scalars(range(-3, 2))): extra.append((6 + 2 * i, g))
        extra.append((70, ['s_sub_u32 s%d, s%d, 4' % (sD, sD)]))
        trn = self.at_block('L_tr', steps, w1 + w0s[:32], knext_s, 85, self.at_dma() + self.wo_dma(1, 'wo0'), extra=extra)
        fa = self.blk('finA')
        for t in self.stamp(4): fa(t)
        fa('s_nop 3')
        for t in self.finalize((0, 1), ['s_mov_b32 s94, s%d' % sJ], 'ca'): fa(t[1])
        for t in self.stamp('fa1'): fa(t)
        self.ffn_a(fa)
        for t in self.stamp('fa2'): fa(t)
        for t in self.wo7_setup(): fa(t)
        fa('s_lshl_b32 s94, s%d, 1\ns_sub_u32 s%d, 13, s94' % (sJ, sCnt))
        for t in self.flag_addr(vPoll, F_CA, ['s_and_b32 s94, s2, 0xe7'], 4, 8): fa(t)
        fa('s_cmp_eq_u32 s%d, 7\ns_cbranch_scc1 L_pub7' % sJ)
        pub7 = self.blk('pub7', tail=True)
        pub7('L_pub7:\nWAIT ca:0\ns_barrier')
        for t in self.publish(F_CA, True): pub7(t)
        pub7('s_branch L_s3')
        def single(name, par, masked, dma, nxt, nxt_mode='s', extra=(), **kw):
            wa, wb = self.softmax('s', par), self.softmax('s', par ^ 1)
            self.check(wa, 's', par, 's')
            steps = [self.qk_step('s', par ^ 1, 0, 0, masked), self.pv_step('s', par, 0, 16)]
            pre = []
            if masked:
                for g in self.mask_scalars(range(-3, 2)): pre += g
            extra = list(extra) + [(40, ['s_sub_u32 s%d, s%d, 4' % (sD, sD)])]
            return self.at_block(name, steps, wa[32:] + wb[:32], nxt, 53, dma, extra=extra, pre=pre, **kw)
        sp0 = single('L_sp', 0, False, self.at_dma(), knext_s)
        sp1 = single('L_sp1', 1, False, self.at_dma(), knext_s, extra=[(44, ['s_sub_u32 s%d, s%d, 1' % (sCnt, sCnt)])])
        sp1('s_cmp_lg_u32 s%d, 0\ns_cbranch_scc1 L_sp' % sCnt)
        s1b = single('L_s1', 0, False, self.at_dma(), knext_s, wait='WAIT kv:1 ca:0 lgkm0', post_bar=self.publish(F_CA, True))
        s2b = single('L_s2', 1, True, self.at_dma(False, True), knext_s)
        vnext_s = [self.v_read(n, n & 1, n >> 1) for n in range(6)]
        ld, chk = self.poll(vPoll, vT, 4)
        pl = self.groups(self.pctx_loads(0))
        ex = [(1, ld), (26, chk + self.acquire())] + [(28 + 4 * i, pl.pop(0)) for i in range(9)]
        s3b = single('L_s3', 0, True, [], vnext_s, wait='WAIT kv:0 lgkm0', extra=ex)
        fin = self.blk('atfin')
        wl = self.softmax('s', 1)
        self.check(wl, 's', 1, None)
        for g in range(32, 64):
            for t in wl[g]: fin(t)
            if g % 4 == 1: fin('s_nop 0')
            if g % 8 == 3:
                for t in pl.pop(0): fin(t)
        for t in self.stamp('fb1'): fin(t)
        self.ffn_b(fin)
        for t in self.stamp(5): fin(t)
        self.pl_rest = pl
        head = [p0, p1]; tail = [s3b, fin]
        return [head + [dp, dp, dp, dpx, dd, dd, trn, fa, sp0, sp1, sp0, sp1, s1b, s2b] + tail,
                head + [dp, dpx, dd, dd, trn, fa, sp0, sp1, s1b, s2b] + tail,
                head + [dpx, dd, trn, fa, sp0, sp1, sp0, sp1, s1b, s2b] + tail,
                head + [dp, dp, dpx, dd, dd, trn, fa, pub7] + tail]

    @staticmethod
    def groups(seq):
        out = [[]]
        for t in seq:
            out[-1].append(t)
            if t.startswith('buffer'): out.append([])
        if not out[-1]: out.pop()
        return out

    def o_scalars(self):
        out = []
        A, B = 's%d' % sA, 's%d' % sB
        for n in range(4):
            out += ['s_add_u32 %s, s%d, %d' % (A, sY, n), 's_and_b32 %s, %s, 3' % (A, A), 's_lshl_b32 %s, s%d, 2' % (B, sX), 's_add_u32 %s, %s, %s' % (A, A, B)]
            if n:
                out += ['s_lshl_b32 %s, %s, 4' % (B, A), 's_add_u32 %s, %s, s%d' % (B, B, sJ), 's_lshl_b32 %s, %s, 15' % (B, B),
                        's_add_u32 %s, %s, s%d' % (B, B, sMC), 's_add_u32 s%d, %s, %d' % (sPc[n - 1], B, CTXB)]
            out += ['s_lshl_b32 %s, %s, 2' % (A, A), 's_add_u32 %s, %s, s%d' % (A, A, sW), 's_mul_i32 %s, %s, %d' % (A, A, 32 * 1152),
                    's_mul_i32 %s, s%d, 288' % (B, sY), 's_add_u32 s%d, %s, %s' % (sWoS[n], A, B)]
        out += ['s_mul_i32 s%d, s%d, 9216' % (sT2, sW),
                's_cmp_eq_u32 s%d, 3\ns_cselect_b32 s%d, %d, s%d' % (sW, sT3, OOB, sWoS[1]),
                's_cmp_eq_u32 s%d, 3\ns_cselect_b32 s%d, %d, s%d' % (sW, sWoM1, 3 * 9216 + 1024, sT2)]
        return out
    def wo7_setup(self):
        out = ['s_sub_u32 s94, 3, s%d' % sW, 's_mul_i32 s94, s94, %d' % (32 * 1152), 's_add_u32 s%d, s%d, s94' % (sWo7, sWoS[1]),
               's_lshl_b32 s94, s%d, 6' % sW, 'v_lshrrev_b32 v%d, 4, v%d' % (vU, vL16), 'v_add_u32 v%d, s94, v%d' % (vU, vU)]
        for i in range(2):
            if i: out.append('v_add_u32 v%d, 0x100, v%d' % (vU, vU))
            out += ['v_mul_u32_u24 v%d, 0xe39, v%d' % (vU + 1, vU), 'v_lshrrev_b32 v%d, 16, v%d' % (vU + 1, vU + 1),
                    'v_mul_u32_u24 v%d, 0x360, v%d' % (vU + 1, vU + 1), 'v_lshl_add_u32 v%d, v%d, 4, v%d' % (vWo7[i], vU, vU + 1)]
        return out
    def wo_dma(self, n, tag):
        if n == 4:
            ld = 'buffer_load_dwordx4 v%d, %s, s%d offen lds @%s'
            return [['s_lshr_b32 m0, s%d, 2' % sMW], [ld % (vWo7[0], srd(R_WO), sWo7, tag), 's_add_u32 m0, m0, 4096'],
                    [ld % (vWo7[1], srd(R_WO), sWo7, tag), 's_mov_b32 m0, 8192'], [ld % (vWo[8], srd(R_WO), sWo7, tag)]]
        loc = [WK0, WK0 + 4 * 9216, 9216, 5 * 9216, 0][n]
        so_ = [sWoS[0], sT3, sWoS[2], sWoS[3], sWoS[1]][n]
        out = []
        for i in range(9):
            if i % 4 == 0:
                out.append(['s_add_u32 m0, s%d, %d' % (sWoM1 if n == 1 else sT2, loc + (i >> 2) * 4096)] if n < 4 else ['s_mov_b32 m0, %d' % ((i >> 2) * 4096)])
            out.append(['buffer_load_dwordx4 v%d, %s, s%d offen offset:%d lds @%s' % (vWo[i], srd(R_WO), so_, (i & 3) * 1024, tag)])
        return self.merge_m0(out)
    def pctx_loads(self, blk):
        out = []
        for n in range(1, 4):
            if blk:
                out += ['s_lshl_b32 s94, s%d, 1' % sJ, 's_sub_u32 s94, 15, s94', 's_lshl_b32 s94, s94, 15', 's_add_u32 s%d, s%d, s94' % (sPc[n - 1], sPc[n - 1])]
            out.append('s_add_u32 s%d, s%d, 4096' % (sPc4, sPc[n - 1]))
            for ks in range(4):
                for qt in range(2):
                    out.append('buffer_load_dwordx4 %s, v%d, %s, s%d offen offset:%d sc1' % (rr(pctx(blk, n, qt, ks)), vL16, srd(R_WS), sPc4 if qt else sPc[n - 1], ks * 1024))
        return out
    def wo_reads(self, f, c, u):
        base, off = (vRO[0], 9216 * c) if c < 7 else ((vRO[1], 9216 * (c - 7)) if c < 14 else (vRO[2], 9216 * (c - 14)))
        r = fifo(f)
        return ['ds_read_b64_tr_b16 %s, v%d offset:%d' % (rr((r[0], r[1] + 2 * hf), 2), base, off + hf * 4608 + 32 * u) for hf in range(2)]
    def part_store(self, acc, u, tag, sPart=sPart):
        x, y = acc(u, 0)[1], acc(u, 1)[1]
        cv = ['v_cvt_pk_bf16_f32 v%d, v%d, v%d' % (x, x, x + 1), 'v_cvt_pk_bf16_f32 v%d, v%d, v%d' % (x + 1, x + 2, x + 3),
              'v_cvt_pk_bf16_f32 v%d, v%d, v%d' % (x + 2, y, y + 1), 'v_cvt_pk_bf16_f32 v%d, v%d, v%d' % (x + 3, y + 2, y + 3)]
        st = ['buffer_store_dwordx4 %s, v%d, %s, s%d offen sc1 @%s' % (v4(x), vL16, srd(R_WS), sPart, tag), 's_add_u32 s%d, s%d, 8192' % (sPart, sPart)]
        return cv, st
    def part_base(self, blk, dst, wave, extra):
        out = ['s_mov_b32 s94, s%d' % sJ] if blk == 0 else ['s_sub_u32 s94, 15, s%d' % sJ]
        out += ['s_lshl_b32 s94, s94, 2', 's_add_u32 s94, s94, s%d' % sY, 's_lshl_b32 s94, s94, 2', 's_add_u32 s94, s94, s%d' % wave,
                's_mul_i32 s94, s94, %d' % (72 * 1024), 's_add_u32 s94, s94, %d' % PART, 's_add_u32 s%d, s94, s%d' % (dst, extra)]
        return out

    def o_phase(self):
        b = self.blk('oproj')
        LA = 10; P0 = 32
        pv, vfr, _ = self.pv_step('s', 1, 0, 0)
        seq = [(0, c, u) for c in range(16) for u in range(9)] + [(1, c, u) for c in range(4) for u in range(9)]
        seq += [(1, c, u) for u in range(9) for c in range(4, 16)]
        ms = list(pv)
        for f, (blk, c, u) in enumerate(seq):
            for qt in range(2):
                d = lacc(u, qt) if blk == 0 else hacc(u, qt)
                ms.append(mfma(d, fifo(f), pctx(blk, c >> 2, qt, c & 3), '0' if c == 0 else d))
        G = len(ms)
        st = Stream(G)
        for n in range(6, 16): st.front[2 * (n - 6)].append(vfr[n][0])
        for f, (blk, c, u) in enumerate(seq):
            for hf, t in enumerate(self.wo_reads(f, c, u)): st.front[P0 + 2 * f - LA + hf].append(t)
        B1 = P0 - LA - 1; B2 = P0 + 2 * 63 - LA - 1; B2b = 190; B3 = int(self.opt.get('b3', 470))
        st.front[B1] += ['WAIT wo0:0 lgkm0', 's_barrier']
        st.vmem(self.pl_rest[:5], 1, 4)
        e = st.vmem(self.wo_dma(4, 'wo1') + self.wo_dma(2, 'wo1') + self.pl_rest[5:] + self.wo_dma(3, 'wo1'), B1 + 1, 4)
        assert e < B2 - 8, e
        e = st.valu(self.finalize((2, 3), ['s_sub_u32 s94, 15, s%d' % sJ], 'cb'), 0, cap=lambda g: 12 if g % 2 == 0 else 8)
        assert e < B2b - 20, e
        st.front[B2] += ['WAIT wo1:0', 's_barrier']
        st.front[B2b] += ['WAIT cb:0', 's_barrier']
        st.gaps[B2b + 1] += self.publish(F_CB, True); st.gaps[B2b + 5] += self.publish(F_FF, False)
        st.gaps[B2b + 8] += ['v_add_u32 v%d, 0x4000, v%d' % (vPoll, vPoll)]
        ld, chk = self.poll(vPoll, vT, 4)
        st.vmem([ld], 228, 4)
        st.gaps[256] += chk + self.acquire()
        e = st.vmem(self.groups(self.pctx_loads(1)), 258, 4)
        assert e < 370, e
        pb = ['s_lshl_b32 s95, s%d, 10' % sX] + self.part_base(0, sPart, sW, 95)
        st.front[250] = pb + st.front[250]
        for u in range(9):
            cv, so_ = self.part_store(lacc, u, 'pl')
            e = st.valu([(0, t) for t in cv], P0 + 270 + 2 * u + 1 + 4)
            st.vmem([so_], max(e + 1, 312 + 13 * u), 2)
        pb = ['s_lshl_b32 s95, s%d, 10' % sX] + self.part_base(1, sPart2, sW, 95)
        st.front[400] = pb + st.front[400]
        spill = []
        for u in range(9):
            cv, so_ = self.part_store(hacc, u, 'ph', sPart2)
            g = 392 + 24 * u + 23 + 5
            if g + 6 < G:
                e = st.valu([(0, t) for t in cv], g); st.vmem([so_], e + 1, 2)
            else: spill = cv + so_
        st.front[B3] += ['WAIT pl:0', 's_barrier']
        st.gaps[B3 + 1] += self.publish(F_PL, False)
        g = 430
        for grp in self.final_prefetch():
            if grp[-1].startswith('buffer'): g = st.vmem([grp], g, 3)
            else: st.gaps[g] += grp; g += 2
        assert g < 520, g
        fa = self.flag_addr(vPoll, F_PL, ['s_and_b32 s94, s2, 0xf8'], 8, 1)
        st.gaps[B3 + 30] += fa[:5]; st.gaps[B3 + 32] += fa[5:]
        ld, chk = self.poll(vPoll, vT, 8)
        st.vmem([ld], G - 40, 3)
        fl = self.final_loads(0)
        for g in range(G): st.gaps[g] += self.stamp('o%d' % g)
        b.autowait()
        emit_gaps(b, ms, [st.front[g] + st.gaps[g] for g in range(G)])
        b('s_nop 6')
        for t in spill: b(t)
        for t in self.stamp(7): b(t)
        b('s_waitcnt vmcnt(0)\ns_barrier')
        for t in self.publish(F_PH, False): b(t)
        for t in chk + fl[0] + fl[1]: b(t)
        b('v_add_u32 v%d, 0x4000, v%d' % (vPoll, vPoll))
        b('s_waitcnt vmcnt(0)')
        self.final_combine(b, 0)
        for t in self.stamp(8): b(t)
        ld, chk = self.poll(vPoll, vT, 8)
        for t in ld: b(t)
        b('s_waitcnt vmcnt(0)')
        for t in chk: b(t)
        for t in self.stamp(9): b(t)
        fl = self.final_loads(1)
        for t in fl[0] + fl[1]: b(t)
        b('s_waitcnt vmcnt(0)')
        self.final_combine(b, 1)
        return b

    def item_scalars(self, blk, rnd):
        out = ['s_and_b32 s95, s%d, 1' % sX, 's_mul_i32 s94, s95, %d' % (5 if blk == 0 else 4)]
        if rnd == 0: out += ['s_add_u32 s94, s94, s%d' % sW]
        else: out += ['s_add_u32 s94, s94, 4']
        return out
    def item_exists(self, blk):
        return ['s_and_b32 s95, s%d, 1' % sX, 's_xor_b32 s95, s95, %d' % blk, 's_or_b32 s95, s95, s%d' % sW, 's_cmp_eq_u32 s95, 0']
    vOA = [4, 5, 6, 7]
    vRw = [8, 9]
    def final_prefetch(self):
        out = []
        for blk in range(2):
            g = (['s_mov_b32 s94, s%d' % sJ] if blk == 0 else ['s_sub_u32 s94, 15, s%d' % sJ])
            g += ['s_lshl_b32 s94, s94, 2', 's_lshr_b32 s95, s%d, 1' % sX, 's_add_u32 s94, s94, s95', 's_lshl_b32 s94, s94, 5']
            out.append(g + ['v_bfe_u32 v%d, v%d, 4, 4' % (vU, vL16), 'v_add_u32 v%d, s94, v%d' % (self.vRw[blk], vU)])
            out.append(['v_lshlrev_b32 v%d, 2, v%d' % (vU, self.vRw[blk]), 'v_add_u32 v%d, %d, v%d' % (vU, GBUF, vU)])
            out.append(['buffer_load_dword v%d, v%d, %s, 0 offen sc1' % (2 * blk, vU, srd(R_WS))])
            out.append(['buffer_load_dword v%d, v%d, %s, 0 offen offset:64 sc1' % (2 * blk + 1, vU, srd(R_WS))])
            out.append(['v_mul_u32_u24 v%d, 0x480, v%d' % (vU, self.vRw[blk]), 'v_lshrrev_b32 v%d, 8, v%d' % (vU + 1, vL16)])
            out.append(['s_mul_i32 s%d, s%d, 288' % (sT0, sY), 'v_lshl_add_u32 v%d, v%d, 3, v%d' % (vU, vU + 1, vU), 'v_add_u32 v%d, s%d, v%d' % (vU, sT0, vU)])
            for rnd in range(2):
                it = 2 * blk + rnd
                g = self.item_scalars(blk, rnd) + ['s_lshl_b32 s94, s94, 5']
                if rnd: g += self.item_exists(blk) + ['s_cselect_b32 s94, s94, 0x40000000']
                out.append(g + ['v_add_u32 v%d, s94, v%d' % (self.vOA[it], vU)])
                out.append(['s_movk_i32 s%d, 0x4800' % sT1, 'buffer_load_dwordx2 v[%d:%d], v%d, %s, 0 offen' % (vX + 4 * it, vX + 4 * it + 1, self.vOA[it], srd(R_X))])
                out.append(['buffer_load_dwordx2 v[%d:%d], v%d, %s, s%d offen' % (vX + 4 * it + 2, vX + 4 * it + 3, self.vOA[it], srd(R_X), sT1)])
        return out
    @staticmethod
    def pq(rnd, p): return lacc(4 * rnd + (p >> 1), p & 1)[1]
    def final_loads(self, blk):
        skip = self.lab('skip')
        out = [['s_lshr_b32 s%d, s%d, 1' % (sT0, sX)], []]
        for rnd in range(2):
            o = out[rnd]
            if rnd: o += self.item_exists(blk) + ['s_cbranch_scc0 ' + skip]
            o += self.item_scalars(blk, rnd) + ['s_lshl_b32 s%d, s94, 13' % sT1] + self.part_base(blk, sT1, sT0, sT1)
            o.append('s_add_u32 s%d, s%d, 4096' % (sT2, sT1))
            for p in range(8):
                o.append('buffer_load_dwordx4 %s, v%d, %s, s%d offen offset:%d sc1' % (v4(self.pq(rnd, p)), vL16, srd(R_WS), sT1 + (p >> 2), (p & 3) * 1024))
        out[1].append(skip + ':')
        return out
    def final_combine(self, b, blk):
        skip = self.lab('skip')
        A, X, C0, T, O = vU, vU + 8, vTs, vTs + 2, 10
        b('v_mov_b32 v%d, 0x3f80\nv_mov_b32 v%d, 0x3f800000' % (C0, C0 + 1))
        for rnd in range(2):
            it = 2 * blk + rnd
            if rnd:
                for t in self.item_exists(blk): b(t)
                b('s_cbranch_scc0 ' + skip)
            for d in range(4):
                b('v_lshlrev_b32 v%d, 16, v%d\nv_and_b32 v%d, 0xffff0000, v%d' % (A + 2 * d, self.pq(rnd, 0) + d, A + 2 * d + 1, self.pq(rnd, 0) + d))
            for p in range(1, 8):
                for d in range(4):
                    for h in range(2):
                        b('v_dot2_f32_bf16 v%d, v%d, v%d, v%d' % (A + 2 * d + h, self.pq(rnd, p) + d, C0 + h, A + 2 * d + h))
            for d in range(4):
                b('v_lshlrev_b32 v%d, 16, v%d\nv_and_b32 v%d, 0xffff0000, v%d' % (X + 2 * d, vX + 4 * it + d, X + 2 * d + 1, vX + 4 * it + d))
            self.ffn_add(b, blk, it, X)
            for qt in range(2):
                b('v_sub_f32 v%d, 1.0, v%d' % (T, 2 * blk + qt))
                for e in range(4):
                    r = 4 * qt + e
                    b('v_mul_f32 v%d, v%d, v%d\nv_fmac_f32 v%d, v%d, v%d' % (X + r, T, X + r, X + r, 2 * blk + qt, A + r))
            for d in range(4):
                b('v_cvt_pk_bf16_f32 v%d, v%d, v%d' % (O + d, X + 2 * d, X + 2 * d + 1))
            b('s_movk_i32 s%d, 0x4800' % sT1)
            b('buffer_store_dwordx2 v[%d:%d], v%d, %s, 0 offen' % (O, O + 1, self.vOA[it], srd(R_OUT)))
            b('buffer_store_dwordx2 v[%d:%d], v%d, %s, s%d offen' % (O + 2, O + 3, self.vOA[it], srd(R_OUT), sT1))
        b(skip + ':')
    def ffn_add(self, b, blk, it, X):
        lab = self.lab('ffa'); back = self.lab('back')
        b('v_readfirstlane_b32 s94, v%d\ns_sub_u32 s94, s%d, s94\ns_cmp_lt_u32 s94, 32\ns_cbranch_scc1 %s\n%s:' % (self.vRw[blk], sTok, lab, back))
        t = self.blk(lab, tail=True)
        t(lab + ':')
        t('v_lshlrev_b32 v16, 2, v%d\nv_add_u32 v16, %d, v16\ns_mov_b32 s%d, 0x4000' % (vL16, FLAG + F_FF * 16384 + 112 * 64, sSpin))
        t('%s_l:' % lab)
        t('s_movk_i32 s94, 0x1000\ns_movk_i32 s95, 0x2000')
        t('buffer_load_dword v17, v16, %s, 0 offen sc1\nbuffer_load_dword v18, v16, %s, s94 offen sc1\nbuffer_load_dword v20, v16, %s, s95 offen sc1' % (srd(R_WS), srd(R_WS), srd(R_WS)))
        t('s_waitcnt vmcnt(0)\nv_and_b32 v17, v17, v18\nv_cmp_ne_u32 vcc, 1, v17\ns_mov_b64 s[%d:%d], vcc\nv_cmp_ne_u32 vcc, 1, v20' % (sRet, sRet + 1))
        t('s_and_b32 s94, vcc_lo, 0xffff\ns_or_b32 s94, s94, s%d\ns_or_b32 s94, s94, s%d\ns_cbranch_scc0 %s_ok' % (sRet, sRet + 1, lab))
        t('s_sleep 4\ns_sub_u32 s%d, s%d, 1\ns_cmp_lg_u32 s%d, 0\ns_cbranch_scc1 %s_l' % (sSpin, sSpin, sSpin, lab))
        t('%s_ok:' % lab)
        t('v_mul_u32_u24 v16, 0x480, v%d\nv_sub_u32 v16, v%d, v16\nv_lshlrev_b32 v16, 1, v16\nv_add_u32 v16, %d, v16' % (self.vRw[blk], self.vOA[it], YACC))
        Y = [qfrag(2 + (rep >> 2), rep & 3)[1] for rep in range(8)]
        for rep in range(8):
            t('s_mov_b32 s94, %d\nbuffer_load_dwordx4 %s, v16, %s, s94 offen sc1' % (4096 * rep, v4(Y[rep]), srd(R_WS)))
        t('s_waitcnt vmcnt(0)')
        for rep in range(1, 8):
            for e in range(4): t('v_add_f32 v%d, v%d, v%d' % (Y[0] + e, Y[0] + e, Y[rep] + e))
        for qt in range(2):
            t('v_add_u32 v17, %d, v%d\nv_cmp_eq_u32 vcc, s%d, v17\nv_mov_b32 v18, s%d\ns_nop 0\nv_cndmask_b32 v18, 0, v18, vcc' % (16 * qt, self.vRw[blk], sTok, sRsel))
            for e in range(4): t('v_fmac_f32 v%d, v18, v%d' % (X + 4 * qt + e, Y[0] + e))
        t('s_branch ' + back)

    def finish(self):
        b = self.blk('finish')
        if self.stamps:
            b('s_waitcnt vmcnt(0)')
            for t in self.stamp('end'): b(t)
            b('s_lshl_b32 s94, s2, 8\ns_lshl_b32 s95, s%d, 6\ns_add_u32 s94, s94, s95\ns_add_u32 s94, s94, %d' % (sW, TIMB))
            b('v_mov_b32 v0, s94')
            for n, r in enumerate(self.STAMP):
                b('v_mov_b32 v1, s%d\nbuffer_store_dword v1, v0, %s, 0 offen offset:%d' % (r, srd(R_WS), 4 * n))
        b('s_waitcnt vmcnt(0) lgkmcnt(0)')
        b('L_end:\ns_endpgm')
        return b

    def build(self):
        self.ffwg = 1000 if 'noffn' in self.opt else 112
        setup = self.setup(); start = self.start()
        kv0 = self.kv_phase(0); kv1 = self.kv_phase(1)
        q = self.q_phase()
        att = self.attention()
        op = self.o_phase()
        fin = self.finish()
        traces = [[setup, start, kv, q] + a + [op, fin] for kv in (kv0, kv1) for a in att]
        derive_waits(traces)
        allb = self.blocks + self.tail
        finalize_waits(allb)
        errs = []
        for tr in traces: errs += check_hazards(tr)
        for b in self.tail: errs += check_hazards([b])
        for e in sorted(set(errs)): print(e, file=sys.stderr)
        if errs: raise SystemExit('hazards found')
        hdr = open('cdna_kernels/%s.s.ref' % NAME).read().split('; Override')[0]
        out = hdr + ('; stamps=%s\n; wsoff=%s\n' % (','.join(self.stamps), self.opt.get('wsoff', 0)) if self.stamps else '') + '; @launch grid=(256,1,1) block=(256,1,1) lds=%d\n' % LDS_BYTES
        out += '.amdgcn_target "amdgcn-amd-amdhsa--gfx950"\n.text\n.globl %s_kernel\n.p2align 8\n.type %s_kernel,@function\n%s_kernel:\n' % (NAME, NAME, NAME)
        out += render(allb)
        out += '.section .rodata,"a"\n.p2align 6\n.amdhsa_kernel %s_kernel\n' % NAME
        out += '  .amdhsa_next_free_vgpr 512\n  .amdhsa_next_free_sgpr 102\n  .amdhsa_accum_offset 256\n  .amdhsa_group_segment_fixed_size 0\n'
        out += '  .amdhsa_kernarg_size 120\n  .amdhsa_user_sgpr_count 2\n  .amdhsa_user_sgpr_kernarg_segment_ptr 1\n  .amdhsa_system_sgpr_workgroup_id_x 1\n.end_amdhsa_kernel\n'
        return out

if __name__ == '__main__':
    opts = dict(a.split('=') for a in sys.argv[2:])
    st = opts.pop('stamps', None)
    g = Gen(stamps=st.split(',') if st else None)
    g.opt = opts
    open(sys.argv[1], 'w').write(g.build())
```

```python
import sys, math
from asmlib import *

NAME = 'gated_mix__compressed_kv_cla__moe_arch_mod__prompt'

KBUF  = 0
VBUF  = 16 << 20
CTXB  = 32 << 20
PART  = 48 << 20
MISC  = 68 << 20
GBUF  = MISC
KEYB  = MISC + 8192
YACC  = MISC + 16384
FLAG  = MISC + 65536
TIMB  = MISC + (1 << 19)
WS_BYTES = 70 << 20
F_KV, F_KV2, F_CA, F_CB, F_PL, F_PH, F_FF = range(7)
OOB = 0x7ffffff0

XC, XA, XB = 0, 32768, 65536
WK0, WV0, WK1, WV1 = 98304, 114688, 131072, 147456
LDS_BYTES = 163840

def srd(n): return 's[%d:%d]' % (n, n + 3)
R_WS, R_X, R_C, R_WK, R_WV, R_WQ, R_WO, R_OUT, R_DBG, R_WR, R_GW, R_WG, R_WU, R_WD = range(4, 60, 4)
sW, sX, sY, sJ, sH = 60, 61, 62, 63, 3
sCo = [None] + list(range(64, 71))
sWo = [None] + list(range(71, 74))
sXo = [None] + list(range(74, 81))
sMC, sMW = 81, 82
sT0, sT1, sT2, sT3 = 83, 84, 85, 86
sSt = 87
sRet = 88
sTs = 90
sCnt = 92
sTok = 93
sFf = 70
sXcc, sLocal = 0, 1
sK, sV, sR, sOld, sD, sSpin = 64, 65, 66, 67, 68, 69
sTri = list(range(71, 76)); sNone = list(range(76, 81))
def so(lst, i): return '0' if lst[i] is None else 's%d' % lst[i]

def v4(n): return 'v[%d:%d]' % (n, n + 3)
def a4(n): return 'a[%d:%d]' % (n, n + 3)
def rr(r, n=4):
    f, i = r
    return '%s[%d:%d]' % (f, i, i + n - 1) if n > 1 else '%s%d' % (f, i)
def mfma(d, a, b, c):
    return 'v_mfma_f32_16x16x32_bf16 %s, %s, %s, %s' % (rr(d), rr(a), rr(b), c if isinstance(c, str) else rr(c))

vC = [0, 1]; vW = [2, 3]; vRC = [4, 5]; vRW = list(range(6, 14)); vL16 = 14; vT = 15
vPf = 16; vPq = 18
R_PF = 76; sPfO = 88; sPfS = 89
vRX2 = [16, 17]; vRd = 18; vPoll = 19; vE = [20, 21]; vM = 22; vM2 = 23; vB = 24; vOne = 28; vOr = 13
QB = 32; PB = 160; NB = 192; vTs = 208; vU = 212
def qacc(i, qt): return ('v', QB + (qt * 8 + i) * 4)
def qfrag(qt, ds): return qacc(2 * ds, qt)
def hole(qt, n): return qacc(2 * n + 1, qt)
def stile(mode, par, kt, qt):
    if mode == 'd': return hole(qt, 2 * par + kt)
    return hole((qt - 2) * 2 + (kt >> 1), 2 * par + (kt & 1))
def pfrag(mode, par, qt, ks):
    n = qt if mode == 'd' else (qt - 2) * 2 + ks
    return ('v', PB + 16 * par + 4 * n)
def negm(qt): return ('v', NB + 4 * qt)
def lacc_(qt): return ('v', (208, 248, 252, 244)[qt])
def oacc(dt, qt): return ('a', (qt * 8 + dt) * 4)
def fifo(n): return ('a', 128 + 4 * (n & 15))
vWo = list(range(228, 237)); vRO = [237, 238, 239]
vX = 240
def pctx(blk, n, qt, ks):
    if n == 0: return qfrag(2 * blk + qt, ks)
    i = ((n - 1) * 8 + qt * 4 + ks) * 4
    return ('a', 64 * blk + i) if i < 64 else ('a', 192 + 32 * blk + i - 64)
def lacc(u, qt):
    n = 2 * u + qt
    return hole(n >> 2, n & 3) if n < 16 else ('v', PB + 4 * (n - 16))
def hacc(u, qt):
    n = 2 * u + qt
    return qfrag(n >> 2, n & 3) if n < 8 else ('v', PB + 8 + 4 * (n - 8))
vWo7 = [16, 17]
sWoS = [12, 13, 14, 15]; sPc = [16, 17, 18]; sPart = 19; sA, sB = 20, 21; sWoM1 = 22; sRsel = 23; sWo7 = 87; sPart2 = 64; sPc4 = 65
BIGN = 0xf1800000
TREF = 0x41a00000
QSCALE = 0x3e0293ee

class Stream:
    def __init__(self, n):
        self.n = n; self.front = [[] for _ in range(n)]; self.gaps = [[] for _ in range(n)]
    def cost(self, g):
        c = 0
        for t in self.front[g] + self.gaps[g]:
            for x in t.split('\n'):
                if x.startswith('buffer') or x.startswith('v_exp') or x.startswith('v_rcp'): c += 8
                elif x.startswith('ds_') or x.startswith('v_'): c += 4
        return c
    def has_vmem(self, g): return 0 <= g < self.n and any(t.startswith('buffer') for t in self.front[g] + self.gaps[g])
    def vmem(self, groups, g, sp):
        for grp in groups:
            if not any(t.startswith('buffer') for t in grp):
                self.front[g] += grp; g += 1; continue
            while any(self.has_vmem(x) for x in range(g - sp + 1, g + sp)): g += 1
            self.front[g] += grp; g += 1
        return g
    def valu(self, seq, g, cap=8, vm_from=0, vm_sp=1):
        last = g
        for (e, t) in seq:
            if e > g: g = e
            if t.startswith('buffer'):
                x = max(g + 1, vm_from)
                while any(self.has_vmem(y) for y in range(x - 1, x + 2)): x += 1
                self.front[x].append(t); vm_from = x + vm_sp; last = x; continue
            if t.startswith('s_') and not t.startswith('s_nop'):
                self.gaps[g].append(t); continue
            while self.cost(g) >= (cap(g) if callable(cap) else cap): g += 1
            self.gaps[g].append(t)
        return max(g, last)

class Gen:
    def __init__(self, stop=None, stamps=False):
        self.stop = stop; self.stamps = stamps
        self.blocks = []; self.tail = []
        self.nstamp = 0; self.uid = 0; self.opt = {}
    def blk(self, name, tail=False):
        b = Block(name); (self.tail if tail else self.blocks).append(b); return b
    def lab(self, p):
        self.uid += 1; return 'L_%s_%d' % (p, self.uid)
    STAMP = [96, 97, 98, 99, 100, 101, 40, 41, 42, 43, 44, 45, 46, 47]
    def stamp(self, name):
        out = []
        for nm, ins in ((str(name), 's_memrealtime'), (str(name) + 'c', 's_memtime')):
            if self.stamps and nm in self.stamps:
                out += ['%s s[%d:%d]' % (ins, sTs, sTs + 1), 's_waitcnt lgkmcnt(0)', 's_mov_b32 s%d, s%d' % (self.STAMP[self.stamps.index(nm)], sTs)]
        return out

    def setup(self):
        b = self.blk('setup')
        if self.stamps and self.stamps[0] == 'top': b('s_memrealtime s[96:97]')
        b('s_cmp_ge_u32 s2, 256\ns_cbranch_scc1 L_end')
        b('s_load_dwordx16 s[64:79], s[0:1], 0\ns_load_dwordx8 s[80:87], s[0:1], 64')
        b('s_load_dwordx4 s[88:91], s[0:1], 96\ns_load_dwordx2 s[92:93], s[0:1], 112')
        b('v_lshrrev_b32 v16, 6, v0\nv_and_b32 v17, 63, v0')
        b('s_and_b32 s%d, s2, 7' % sX)
        b('v_readfirstlane_b32 s%d, v16' % sW)
        b('s_lshr_b32 s%d, s2, 3\ns_and_b32 s%d, s%d, 3' % (sY, sY, sY))
        b('s_lshr_b32 s%d, s2, 5' % sJ)
        b('s_lshl_b32 s%d, s%d, 2\ns_add_u32 s%d, s%d, s%d' % (sH, sX, sH, sH, sY))
        b('v_lshlrev_b32 v%d, 4, v17' % vL16)
        sizes = {R_WS: WS_BYTES, R_X: 2359296, R_C: 2097152, R_WK: 4194304, R_WV: 4194304, R_WQ: 4718592,
                 R_WO: 4718592, R_OUT: 2359296, R_DBG: 256, R_WR: 1152, R_GW: 1152, R_WG: 5308416,
                 R_WU: 5308416, R_WD: 5308416}
        for r, sz in sizes.items():
            b('s_mov_b32 s%d, %d\ns_mov_b32 s%d, 0x20000' % (r + 2, sz, r + 3))
        l = 17
        b('v_lshrrev_b32 v18, 3, v%d\nv_lshrrev_b32 v19, 4, v%d\nv_and_b32 v20, 7, v%d' % (l, l, l))
        b('v_xor_b32 v20, v20, v19\nv_lshlrev_b32 v20, 4, v20')
        b('s_lshl_b32 s94, s%d, 15\ns_lshl_b32 s95, s%d, 19\ns_add_u32 s94, s94, s95' % (sJ, sW))
        b('v_lshl_add_u32 v21, v18, 10, v20\nv_add_u32 v%d, s94, v21' % vC[0])
        b('v_xor_b32 v%d, 64, v%d' % (vC[1], vC[0]))
        b('v_bfe_u32 v21, v%d, 1, 3\nv_xor_b32 v21, v21, v19\nv_lshlrev_b32 v21, 5, v21' % l)
        b('v_and_b32 v22, 1, v%d\nv_lshl_add_u32 v21, v22, 4, v21\nv_lshl_add_u32 v21, v19, 13, v21' % l)
        b('s_lshl_b32 s94, s%d, 17\ns_lshl_b32 s95, s%d, 8\ns_add_u32 s94, s94, s95' % (sW, sH))
        b('v_add_u32 v%d, s94, v21\nv_xor_b32 v%d, 0x80, v%d' % (vW[0], vW[1], vW[0]))
        b('s_waitcnt lgkmcnt(0)')
        ptr = {R_X: 64, R_C: 66, R_WQ: 68, R_WK: 70, R_WV: 72, R_WO: 74, R_WR: 78, R_WG: 80, R_WU: 82,
               R_WD: 84, R_GW: 86, R_OUT: 88, R_DBG: 90, R_WS: 92}
        for r, p in ptr.items():
            b('s_mov_b64 s[%d:%d], s[%d:%d]' % (r, r + 1, p, p + 1))
        wsoff = int(self.opt.get('wsoff', 0)) << 20
        if wsoff: b('s_add_u32 s%d, s%d, %d\ns_addc_u32 s%d, s%d, 0' % (R_WS, R_WS, wsoff, R_WS + 1, R_WS + 1))
        b('s_getreg_b32 s%d, hwreg(HW_REG_XCC_ID, 0, 4)' % sXcc)
        for t in self.stamp(0): b(t)
        for i in range(1, 8): b('s_mov_b32 s%d, %d' % (sCo[i], (i & 3) * 7168 + (i >> 2) * 262144))
        for i in range(1, 4): b('s_mov_b32 s%d, %d' % (sWo[i], i * 31744))
        b('s_lshl_b32 s%d, s%d, 13\ns_lshl_b32 s%d, s%d, 12' % (sMC, sW, sMW, sW))
        return b

    def kv_dma(self, s):
        p = s & 1; out = []
        for i in range(8):
            g = []
            if i % 4 == 0: g.append('s_add_u32 m0, s%d, %d' % (sMC, XA + p * 32768 + (i >> 2) * 4096)); out.append(g); g = []
            g.append('buffer_load_dwordx4 v%d, %s, %s offen offset:%d lds @pj' % (vC[i & 1], srd(R_C), so(sCo, i), (i & 3) * 1024))
            out.append(g)
        for R, base in ((R_WK, WK0), (R_WV, WV0)):
            out.append(['s_add_u32 m0, s%d, %d' % (sMW, base + p * 32768)])
            for i in range(4):
                out.append(['buffer_load_dwordx4 v%d, %s, %s offen offset:%d lds @pj' % (vW[i >> 1], srd(R), so(sWo, i), i * 1024)])
        return out
    def kv_dma_adv(self):
        return ['v_add_u32 v%d, 0x80, v%d' % (vC[0], vC[0]), 'v_add_u32 v%d, 0x80, v%d' % (vC[1], vC[1]),
                'v_add_u32 v%d, 0x80000, v%d' % (vW[0], vW[0]), 'v_add_u32 v%d, 0x80000, v%d' % (vW[1], vW[1])]
    def kv_pf(self):
        return ['buffer_load_dword a100, v%d, %s, s%d offen @pf' % (vPf, srd(R_PF), sPfO), 's_add_u32 s%d, s%d, s%d' % (sPfO, sPfO, sPfS)]
    QX = [XC, XA, XB]; QW = [WK0, WV0, WK1]
    def q_dma(self, s):
        sl = s % 3; out = []
        for i in range(8):
            if i % 4 == 0: out.append(['s_add_u32 m0, s%d, %d' % (sMC, self.QX[sl] + (i >> 2) * 4096)])
            out.append(['buffer_load_dwordx4 v%d, %s, %s offen offset:%d lds @q%d' % (vC[i & 1], srd(R_X), so(sXo, i), (i & 3) * 1024, s)])
        out.append(['s_add_u32 m0, s%d, %d' % (sMW, self.QW[sl])])
        for i in range(4):
            out.append(['buffer_load_dwordx4 v%d, %s, %s offen offset:%d lds @q%d' % (vW[i >> 1], srd(R_WQ), so(sWo, i), i * 1024, s)])
        return out

    @staticmethod
    def merge_m0(groups):
        out = []; pend = []
        for g in groups:
            if g[0].startswith('s_add_u32 m0'):
                if out: out[-1] = out[-1] + g
                else: out.append(g)
            else: out.append(g)
        return out

    def start(self):
        b = self.blk('start')
        l = 17
        b('v_and_b32 v22, 31, v%d\nv_lshlrev_b32 v22, 4, v22' % l)
        b('v_lshrrev_b32 v23, 5, v%d' % l)
        b('s_lshl_b32 s94, s2, 3\ns_lshl_b32 s95, s%d, 1\ns_add_u32 s94, s94, s95' % sW)
        b('v_add_u32 v23, s94, v23')
        b('s_movk_i32 s95, 1152\nv_mul_lo_u32 v24, v23, s95\nv_add_u32 v24, v24, v22')
        b('v_cmp_gt_u32 vcc, 0x80, v22\nv_mov_b32 v26, %d\nv_add_u32 v25, 0x400, v24' % OOB)
        b('v_cndmask_b32 v25, v26, v25, vcc')
        b('buffer_load_dwordx4 v[28:31], v24, %s, 0 offen' % srd(R_X))
        b('buffer_load_dwordx4 v[32:35], v24, %s, 0 offen offset:512' % srd(R_X))
        b('buffer_load_dwordx4 v[36:39], v25, %s, 0 offen' % srd(R_X))
        for k, R in enumerate((R_WR, R_GW)):
            for i in range(3):
                b('buffer_load_dwordx4 %s, v22, %s, 0 offen offset:%d' % (v4(40 + 12 * k + 4 * i), srd(R), 512 * i))
        for s in (0,):
            for g in self.kv_dma(s):
                for t in g:
                    b(t)
                    if t.startswith('s_add_u32 m0'): b('s_nop 0')
            for t in self.kv_dma_adv(): b(t)
        self.npf = 0; ncp = 0
        if int(self.opt.get('cpf', 1)):
            b('s_getpc_b64 s[%d:%d]\nL_pc:\ns_mov_b32 s%d, L_end-L_pc\ns_mov_b32 s%d, 0x20000' % (R_PF, R_PF + 1, R_PF + 2, R_PF + 3))
            b('s_lshr_b32 s94, s2, 3\ns_lshl_b32 s94, s94, 2\ns_add_u32 s94, s94, s%d\ns_lshl_b32 s94, s94, 10' % sW)
            b('v_min_u32 v64, 7, v%d\nv_lshlrev_b32 v64, 7, v64\nbuffer_load_dword a100, v64, %s, s94 offen @pf' % (l, srd(R_PF)))
            ncp = 1
        if int(self.opt.get('pf', 1)):
            b('s_cmp_eq_u32 s%d, 2\ns_cselect_b64 s[%d:%d], s[%d:%d], s[%d:%d]' % (sW, R_PF, R_PF + 1, R_WK, R_WK + 1, R_WV, R_WV + 1))
            b('s_cmp_lt_u32 s%d, 2\ns_cselect_b64 s[%d:%d], s[%d:%d], s[%d:%d]' % (sW, R_PF, R_PF + 1, R_C, R_C + 1, R_PF, R_PF + 1))
            b('s_cselect_b32 s%d, s%d, s%d\ns_mov_b32 s%d, 0x20000' % (R_PF + 2, R_C + 2, R_WK + 2, R_PF + 3))
            b('s_mov_b32 s94, 0x80000\ns_cselect_b32 s%d, 0x80, s94\ns_mov_b32 s%d, s%d' % (sPfS, sPfO, sPfS))
            b('s_lshl_b32 s94, s%d, 1\ns_add_u32 s94, s94, s%d\ns_lshl_b32 s94, s94, 3\ns_add_u32 s94, s94, s%d\ns_lshl_b32 s94, s94, 15' % (sY, sW, sJ))
            b('v_lshlrev_b32 v64, 10, v%d\nv_add_u32 v64, s94, v64\nv_cmp_gt_u32 vcc, 32, v%d' % (l, l))
            b('v_bfe_u32 v65, v%d, 1, 3\nv_lshlrev_b32 v65, 13, v65\nv_cndmask_b32 v64, v26, v64, vcc' % l)
            b('v_and_b32 v66, 1, v%d\nv_lshl_add_u32 v65, v66, 7, v65\nv_cmp_gt_u32 vcc, 16, v%d' % (l, l))
            b('s_lshl_b32 s94, s%d, 16\ns_lshl_b32 s95, s%d, 8\ns_add_u32 s94, s94, s95\nv_add_u32 v65, s94, v65\nv_cndmask_b32 v65, v26, v65, vcc' % (sJ, sH))
            b('s_cmp_lt_u32 s%d, 2\ns_cselect_b64 vcc, -1, 0\nv_cndmask_b32 v%d, v65, v64, vcc' % (sW, vPf))
            for t in self.kv_pf() + self.kv_pf(): b(t)
            self.npf = 2
        b('v_and_b32 v64, 15, v%d\nv_lshrrev_b32 v65, 4, v%d\nv_bfe_u32 v66, v%d, 1, 3' % (l, l, l))
        b('v_xor_b32 v66, v66, v65\nv_lshlrev_b32 v66, 4, v66\nv_lshl_add_u32 v66, v64, 7, v66')
        b('s_and_b32 s94, s%d, 1\ns_lshl_b32 s94, s94, 12\ns_add_u32 s94, s94, %d' % (sW, XA))
        b('v_add_u32 v%d, s94, v66\nv_xor_b32 v%d, 64, v%d' % (vRC[0], vRC[1], vRC[0]))
        b('v_bfe_u32 v66, v%d, 2, 2\nv_and_b32 v67, 1, v65\nv_lshl_add_u32 v67, v67, 2, v66' % l)
        b('v_lshl_add_u32 v68, v65, 3, v66\nv_lshlrev_b32 v68, 8, v68\nv_and_b32 v69, 3, v%d' % l)
        b('v_lshl_add_u32 v68, v69, 3, v68')
        b('s_lshr_b32 s94, s%d, 1\ns_lshl_b32 s94, s94, 14\ns_add_u32 s94, s94, %d' % (sW, WK0))
        b('v_add_u32 v68, s94, v68')
        for u in range(8):
            b('v_xor_b32 v69, %d, v67\nv_lshl_add_u32 v%d, v69, 5, v68' % (u, vRW[u]))
        b('v_mov_b32 v72, 0\nv_mov_b32 v73, 0\nv_mov_b32 v74, 0\nv_mov_b32 v75, 0')
        b('s_lshl_b32 s94, s2, 6\ns_add_u32 s94, s94, %d' % FLAG)
        b('v_lshlrev_b32 v70, 14, v%d\nv_add_u32 v70, s94, v70' % l)
        b('s_cmp_eq_u32 s%d, 0\ns_cselect_b32 s95, 7, 0' % sW)
        b('v_cmp_gt_u32 vcc, s95, v%d\ns_nop 1\nv_cndmask_b32 v70, v26, v70, vcc' % l)
        b('buffer_store_dword v72, v70, %s, 0 offen sc1 @st0' % srd(R_WS))
        b('s_lshl_b32 s94, s2, 12\ns_lshl_b32 s95, s%d, 10\ns_add_u32 s94, s94, s95\ns_add_u32 s94, s94, %d' % (sW, YACC))
        b('s_cmp_lt_u32 s2, 8\ns_cselect_b32 s94, s94, %d' % OOB)
        b('v_add_u32 v71, s94, v%d' % vL16)
        b('buffer_store_dwordx4 v[72:75], v71, %s, 0 offen sc1 @st0' % srd(R_WS))
        b.autowait()
        b('v_mov_b32 v64, 0\nv_mov_b32 v65, 0')
        for i in range(12):
            b('v_dot2_f32_bf16 v64, v%d, v%d, v64\nv_dot2_f32_bf16 v65, v%d, v%d, v65' % (28 + i, 40 + i, 28 + i, 52 + i))
        b('s_nop 2')
        for dpp in ('quad_perm:[1,0,3,2]', 'quad_perm:[2,3,0,1]', 'row_half_mirror', 'row_mirror'):
            b('v_add_f32_dpp v64, v64, v64 %s row_mask:0xf bank_mask:0xf' % dpp)
            b('v_add_f32_dpp v65, v65, v65 %s row_mask:0xf bank_mask:0xf' % dpp)
            b('s_nop 0')
        b('v_mov_b32 v66, v64\nv_mov_b32 v67, v65\ns_nop 1')
        b('v_permlane16_swap_b32 v64, v66\nv_permlane16_swap_b32 v65, v67')
        b('v_add_f32 v64, v64, v66\nv_add_f32 v65, v65, v67')
        b('v_mul_f32 v65, 0xbfb8aa3b, v65\nv_exp_f32 v65, v65')
        b('v_ashrrev_i32 v66, 31, v64\nv_or_b32 v66, 0x80000000, v66\nv_xor_b32 v66, v66, v64')
        b('v_add_f32 v65, 1.0, v65\nv_rcp_f32 v65, v65')
        b('v_and_b32 v66, 0xfffff800, v66\nv_sub_u32 v67, 0x7ff, v23\nv_or_b32 v66, v66, v67')
        b('v_mov_b32 v67, v66\nv_lshlrev_b32 v68, 2, v23\nv_add_u32 v68, %d, v68' % GBUF)
        b('v_permlane32_swap_b32 v66, v67')
        b('v_cmp_eq_u32 vcc, 0, v22\nv_max_u32 v66, v66, v67\ns_nop 0\nv_cndmask_b32 v68, v26, v68, vcc')
        b('buffer_store_dword v65, v68, %s, 0 offen sc1 @st0' % srd(R_WS))
        b('s_lshl_b32 s94, s2, 4\ns_lshl_b32 s95, s%d, 2\ns_add_u32 s94, s94, s95\ns_add_u32 s94, s94, %d' % (sW, KEYB))
        b('v_mov_b32 v69, s94\nv_cmp_eq_u32 vcc, 0, v%d\ns_nop 1\nv_cndmask_b32 v69, v26, v69, vcc' % l)
        b('buffer_store_dword v66, v69, %s, 0 offen sc1 @st0' % srd(R_WS))
        b('s_waitcnt vmcnt(%d)\ns_barrier' % (4 + self.npf + ncp))
        for t in self.kv_reads(0): b(t)
        b('s_cmp_ge_u32 s%d, 2\ns_cbranch_scc1 L_kv1' % sW)
        return b

    @staticmethod
    def cfrag(k, t): return ('a', 128 + 64 * (k & 1) + 4 * t)
    @staticmethod
    def wfrag(k, u): return ('a', 128 + 64 * (k & 1) + 32 + 4 * u)
    KVSLOT = [0, 1, 14, 15, 16, 17, 30, 31]; KVDST = [16, 24, 128, 136, 144, 152, 132, 140]
    for _n, _hi in enumerate((27, 25, 29, 23, 21, 19)):
        KVSLOT += [_hi, _hi - 1, 2 + 2 * _n, 3 + 2 * _n]
        KVDST += [16 + 8 * _hi, 8 + 8 * _hi, 20 + 8 * _hi, 12 + 8 * _hi]
    @staticmethod
    def kvpair(a, pr):
        return (pr & 3, 2 * (pr >> 3) + ((pr >> 2) & 1)) if a == 0 else (pr >> 3, pr & 7)
    def kvacc(self, a, i, jj):
        pr = [p for p in range(32) if self.kvpair(a, p) == (i >> 1, jj)][0]
        sl = self.KVSLOT[pr]
        if sl == 0: return ('a', 104 + 4 * (i & 1))
        return ('v', 16 + 8 * sl + 4 * (i & 1)) if sl < 30 else ('a', 112 + 8 * (sl - 30) + 4 * (i & 1))
    def kv_store(self, pr):
        off = (pr >> 3) * 131072 + (pr & 7) * 1024
        return ['s_add_u32 s%d, s%d, %d' % (sT0 + (pr & 1), sSt, off & ~4095),
                'buffer_store_dwordx4 %s, v%d, %s, s%d offen offset:%d %s @kvs%d' % (v4(self.KVDST[pr]), vL16, srd(R_WS), sT0 + (pr & 1), off & 4095, self.opt.get('stf', '-').replace('-', ''), pr >= 8)]
    def kv_reads(self, k):
        p, ks = (k >> 1) & 1, k & 1; out = []
        for t in range(8):
            f = self.wfrag(k, t)
            for hf in range(2):
                out.append('ds_read_b64_tr_b16 %s, v%d offset:%d' % (rr((f[0], f[1] + 2 * hf), 2), vRW[t], p * 32768 + (32 * ks + 4 * hf) * 256))
            out.append('ds_read_b128 %s, v%d offset:%d' % (rr(self.cfrag(k, t)), vRC[ks], p * 32768 + (t >> 1) * 8192 + (t & 1) * 2048))
        return out
    @staticmethod
    def qxfrag(k, t): return ('a', 128 + 48 * (k & 1) + 4 * t)
    @staticmethod
    def qwfrag(k, u): return ('a', 128 + 48 * (k & 1) + 16 + 4 * u)
    def q_reads(self, k):
        sl, ks = (k >> 1) % 3, k & 1; out = []
        for u in range(8):
            f = self.qwfrag(k, u)
            for hf in range(2):
                out.append('ds_read_b64_tr_b16 %s, v%d offset:%d' % (rr((f[0], f[1] + 2 * hf), 2), vRW[u], self.QW[sl] - WK0 + (32 * ks + 4 * hf) * 256))
            if u < 4:
                if sl < 2: out.append('ds_read_b128 %s, v%d offset:%d' % (rr(self.qxfrag(k, u)), vRC[ks], self.QX[sl] + u * 2048))
                else: out.append('ds_read_b128 %s, v%d offset:%d' % (rr(self.qxfrag(k, u)), vRX2[ks], u * 2048))
        return out

    def kv_phase(self, a):
        b = self.blk('kv%d' % a)
        if a == 1: b('L_kv1:')
        b.autowait()
        for t in self.stamp(1): b(t)
        BAR = int(self.opt.get('kvbar', 24)); SP = int(self.opt.get('kvsp', 5))
        adv = self.kv_dma_adv()
        carry = self.merge_m0(self.kv_dma(1)) + [adv[:2], adv[2:]]
        for k in range(16):
            s = k >> 1
            last = k == 15
            order = [(i, jj) for i in range(8) for jj in range(8)]
            if last: order = [(2 * self.kvpair(a, pr)[0] + h, self.kvpair(a, pr)[1]) for pr in range(32) for h in range(2)]
            ms = []
            for (i, jj) in order:
                A, B = (self.wfrag(k, i), self.cfrag(k, jj)) if a == 0 else (self.cfrag(k, i), self.wfrag(k, jj))
                d = self.kvacc(a, i, jj)
                ms.append(mfma(d, A, B, '0' if k == 0 else d))
            front = [[] for _ in range(64)]; gaps = [[] for _ in range(64)]
            bar = (0 if last else BAR) if (k & 1) else None
            sp = 4 if k in (0, 13, 14, 15) else SP
            def spread(lo, hi):
                g = lo
                while carry and g < hi:
                    grp = carry.pop(0)
                    if grp[0].startswith('v_'): gaps[g] += grp; g += 1
                    elif grp[0].startswith('s_'): front[g] += grp; g += 1
                    else: front[g] += grp; g += sp
            if bar is None: spread(0, 64)
            else:
                spread(0, bar - 8)
                assert not carry, k
                w = 'WAIT q0:0 lgkm0' if s == 7 else ('WAIT pj:0 lgkm0' if s == 0 else 'WAIT pj:0 st0:0 lgkm0')
                front[bar] += self.stamp('kva%d' % s) + [w, 's_barrier'] + self.stamp('kvb%d' % s)
                if s <= 5: carry = self.kv_dma(s + 2)
                elif s == 6: carry = self.q_dma(0) + [adv[:2], adv[2:]] + self.q_dma(1)
                else: carry = self.q_dma(2)
                carry = self.merge_m0(carry) + [adv[:2], adv[2:]]
                if s == 5:
                    carry.append(['v_lshrrev_b32 v%d, 7, v%d' % (vT, vL16), 'v_and_b32 v%d, 0x70, v%d' % (vC[0], vC[0])])
                    carry.append(['s_lshl_b32 s94, s%d, 7' % sJ, 's_lshl_b32 s95, s%d, 5' % sW, 's_add_u32 s94, s94, s95'])
                    carry.append(['v_add_u32 v%d, s94, v%d' % (vT, vT), 'v_mul_u32_u24 v%d, 0x480, v%d' % (vT, vT)])
                    carry.append(['v_add_u32 v%d, v%d, v%d' % (vC[0], vC[0], vT), 'v_xor_b32 v%d, 64, v%d' % (vC[1], vC[0])])
                    carry.append(['v_subrev_u32 v%d, 0x400000, v%d' % (vW[0], vW[0]), 'v_subrev_u32 v%d, 0x400000, v%d' % (vW[1], vW[1])])
                    carry.append(['s_lshl_b32 s94, s%d, 1' % sJ, 's_sub_u32 s94, 15, s94', 's_mul_i32 s94, s94, %d' % (128 * 1152)])
                    for i in range(1, 8):
                        carry.append(['s_mov_b32 s%d, %d' % (sXo[i], (i & 3) * 8192)] if i < 4 else ['s_add_u32 s%d, s94, %d' % (sXo[i], (i & 3) * 8192)])
                spread(bar + 1, 64)
            if self.npf and k % 2 == 0 and k <= 8:
                g = 60 if k else 62
                while any(t.startswith('buffer') for t in front[g]): g += 1
                front[g] += self.kv_pf()
            if k in (4, 6, 8, 10):
                g = 44
                if k == 4: gaps[g - 2] += ['s_or_b32 s%d, s%d, 0x80' % (sXcc, sXcc), 'v_mov_b32 v19, s%d' % sXcc]
                gaps[g] += ['s_lshr_b32 s94, s%d, 1' % sJ, 's_xor_b32 s94, s94, %d' % ((k - 4) // 2), 's_or_b32 s94, s94, s%d' % sW,
                            's_cselect_b32 s94, 0x100000, s2', 'v_lshl_add_u32 v%d, v%d, 4, s94' % (vT, vL16)]
                front[g + 2] += ['buffer_store_byte v19, v%d, %s, 0 offen sc1' % (vT, srd(R_DBG))]
            if k == 6 and 'nopfq' not in self.opt:
                q = [['s_lshl_b32 s94, s%d, 1' % sJ, 's_sub_u32 s94, 15, s94', 's_lshl_b32 s94, s94, 7', 's_sub_u32 s94, s94, 32', 'v_lshrrev_b32 v%d, 9, v%d' % (vPq, vL16)],
                     ['v_mul_u32_u24 v%d, s94, v%d' % (vPq, vPq), 's_lshl_b32 s94, s%d, 7' % sJ, 's_lshl_b32 s95, s%d, 5' % sY, 's_add_u32 s94, s94, s95'],
                     ['v_lshl_add_u32 v%d, v%d, 4, v%d' % (vPq, vPq, vL16), 'v_lshrrev_b32 v%d, 4, v%d' % (vPq, vPq)],
                     ['v_add_u32 v%d, s94, v%d' % (vPq, vPq), 'v_mul_u32_u24 v%d, 0x480, v%d' % (vPq, vPq), 's_lshl_b32 s95, s%d, 7' % sW]]
                for i, grp in enumerate(q): gaps[52 + i] += grp
                front[57] += ['buffer_load_dword a101, v%d, %s, s95 offen @pf' % (vPq, srd(R_X))]
            if k == 8 and 'nopfq' not in self.opt:
                front[56] += ['s_lshl_b32 s95, s%d, 7' % sW, 'buffer_load_dword a101, v%d, %s, s95 offen offset:512 @pf' % (vPq, srd(R_X))]
            if k == 10 and 'nopfq' not in self.opt:
                front[54] += ['s_cmp_eq_u32 s%d, 0' % sW, 's_cselect_b32 s95, 0, %d' % OOB, 'buffer_load_dword a101, v%d, %s, s95 offen offset:1024 @pf' % (vPq, srd(R_X))]
                gaps[56] += ['s_mul_i32 s94, s%d, 72' % sJ, 's_mul_i32 s95, s%d, 18' % sW, 's_add_u32 s94, s94, s95', 's_lshl_b32 s94, s94, 13', 'v_lshrrev_b32 v%d, 5, v%d' % (vPq, vL16)]
                gaps[57] += ['s_lshl_b32 s95, s%d, 8' % sH, 's_add_u32 s94, s94, s95', 'v_min_u32 v%d, 17, v%d' % (vPq, vPq), 'v_lshlrev_b32 v%d, 13, v%d' % (vPq, vPq)]
                front[60] += ['buffer_load_dword a101, v%d, %s, s94 offen @pf' % (vPq, srd(R_WQ))]
                front[62] += ['buffer_load_dword a101, v%d, %s, s94 offen offset:128 @pf' % (vPq, srd(R_WQ))]
            if k == 13:
                gaps[61] += ['v_lshrrev_b32 v%d, 2, v%d' % (vT, vL16)]
                front[63] += ['buffer_load_dword v%d, v%d, %s, 0 offen sc1' % (vT, vT, srd(R_DBG))]
            if not last:
                rd = self.kv_reads(k + 1); g = 2 if bar is None else bar + 1
            else:
                gaps[1] += ['s_and_b32 s94, s%d, 1' % sW, 's_lshl_b32 s94, s94, 12', 's_add_u32 s94, s94, %d' % XA,
                            's_sub_u32 s94, s%d, s94' % sMC, 'v_add_u32 v%d, s94, v%d' % (vRC[0], vRC[0]), 'v_add_u32 v%d, s94, v%d' % (vRC[1], vRC[1])]
                if a == 1:
                    for u in range(0, 8, 2):
                        gaps[2 + u // 2] += ['v_subrev_u32 v%d, 0x4000, v%d' % (vRW[u], vRW[u]), 'v_subrev_u32 v%d, 0x4000, v%d' % (vRW[u + 1], vRW[u + 1])]
                rd = self.q_reads(0); g = 30
            free = [x for x in range(g, 58) if not any(not t.startswith('s_') for t in front[x])]
            if 'rdense' in self.opt or last: free = free[:len(rd)]
            assert len(free) >= len(rd), k
            for i, t in enumerate(rd): front[free[i * len(free) // len(rd)]].append(t)
            x = self.opt.get('kx', '')
            if 2 <= k <= 12:
                for g in range(64):
                    front[g] = [t for t in front[g] if not (('d' in x and t.startswith('buffer_load_dwordx4')) or ('r' in x and t.startswith('ds_read'))
                                                           or ('b' in x and t.startswith('s_barrier')) or ('w' in x and t.startswith('WAIT')))]
            spill = []
            if last:
                base = KBUF if a == 0 else VBUF
                gaps[1] += ['s_lshl_b32 s%d, s%d, 19' % (sSt, sH), 's_lshl_b32 s94, s%d, 13' % sJ, 's_add_u32 s%d, s%d, s94' % (sSt, sSt)]
                gaps[2] += ['s_and_b32 s94, s%d, 1' % sW, 's_lshl_b32 s94, s94, 16', 's_add_u32 s%d, s%d, s94' % (sSt, sSt)]
                if base: gaps[3] += ['s_add_u32 s%d, s%d, %d' % (sSt, sSt, base)]
                for pr in range(32):
                    a2, jj = self.kvpair(a, pr)
                    d0, d1 = self.kvacc(a, 2 * a2, jj), self.kvacc(a, 2 * a2 + 1, jj)
                    z = self.KVDST[pr]
                    g = []
                    if d0[0] == 'a':
                        t0, t1 = (z, z + 16) if pr else (16, 20)
                        for r in range(4):
                            g.append('v_accvgpr_read_b32 v%d, a%d' % (t0 + r, d0[1] + r))
                            g.append('v_accvgpr_read_b32 v%d, a%d' % (t1 + r, d1[1] + r))
                        d0, d1 = ('v', t0), ('v', t1)
                    x, y = d0[1], d1[1]
                    g += ['v_cvt_pk_bf16_f32 v%d, v%d, v%d' % (z, x, x + 1), 'v_cvt_pk_bf16_f32 v%d, v%d, v%d' % (z + 1, x + 2, x + 3),
                          'v_cvt_pk_bf16_f32 v%d, v%d, v%d' % (z + 2, y, y + 1), 'v_cvt_pk_bf16_f32 v%d, v%d, v%d' % (z + 3, y + 2, y + 3)]
                    gp = 2 * pr + 1 + 4
                    if gp + 1 < 64:
                        h = len(g) // 2
                        gaps[gp] += g[:h]; gaps[gp + 1] += g[h:]
                    else:
                        spill.append((g, []))
                    if pr < 8:
                        gs = 8 + 7 * pr
                        while any(t.startswith('buffer') for t in front[gs]): gs += 1
                        front[gs] += self.kv_store(pr)
            emit_gaps(b, ms, [front[g] + gaps[g] for g in range(64)])
            if last:
                assert not carry
                b('s_nop 7')
                for g, st in spill:
                    for t in g + st: b(t)
        if a == 0: b('s_branch L_q')
        return b

    def spin(self, load, check, back):
        lab = self.lab('spin'); b = self.blk(lab, tail=True)
        b('%s:\ns_mov_b32 s%d, 0x4000' % (lab, sSpin))
        b('%s_l:\ns_sleep 4' % lab)
        for t in load: b(t)
        b('s_waitcnt vmcnt(0)')
        for t in check: b(t)
        b('s_cbranch_scc1 %s' % back)
        b('s_sub_u32 s%d, s%d, 1\ns_cmp_lg_u32 s%d, 0\ns_cbranch_scc1 %s_l\ns_branch %s' % (sSpin, sSpin, sSpin, lab, back))
        return lab
    def flag_addr(self, vdst, kind, base_expr, nlanes, stride):
        return base_expr + ['s_lshl_b32 s94, s94, 6', 's_add_u32 s94, s94, %d' % (FLAG + kind * 16384),
                'v_mul_u32_u24 v%d, %d, v%d' % (vdst, stride * 4, vL16), 'v_add_u32 v%d, s94, v%d' % (vdst, vdst),
                'v_cmp_gt_u32 vcc, %d, v%d' % (nlanes * 16, vL16), 'v_mov_b32 v%d, %d' % (vM2, OOB), 's_nop 0',
                'v_cndmask_b32 v%d, v%d, v%d, vcc' % (vdst, vM2, vdst)]
    def poll(self, vaddr, vdat, nlanes):
        load = ['buffer_load_dword v%d, v%d, %s, 0 offen sc1' % (vdat, vaddr, srd(R_WS))]
        chk = ['v_cmp_eq_u32 vcc, 1, v%d' % vdat, 's_and_b32 s94, vcc_lo, %d' % ((1 << nlanes) - 1), 's_cmp_eq_u32 s94, %d' % ((1 << nlanes) - 1)]
        back = self.lab('back')
        lab = self.spin(load, chk, back)
        return load, chk + ['s_cbranch_scc0 %s' % lab, back + ':']
    def publish(self, kind, release):
        out = []
        if release:
            lab = self.lab('rel'); back = self.lab('back')
            b = self.blk(lab, tail=True)
            b('%s:\nbuffer_wbl2 sc1\ns_waitcnt vmcnt(0)\ns_branch %s' % (lab, back))
            out += ['s_cmp_eq_u32 s%d, 0' % sLocal, 's_cbranch_scc1 %s' % lab, back + ':']
        out += ['s_lshl_b32 s94, s2, 6', 's_add_u32 s94, s94, %d' % (FLAG + kind * 16384), 's_cmp_eq_u32 s%d, 0' % sW,
                's_cselect_b32 s94, s94, 0x8000000', 'v_lshl_add_u32 v%d, v%d, 21, s94' % (vM, vL16), 'v_mov_b32 v%d, 1' % vM2,
                'buffer_store_dword v%d, v%d, %s, 0 offen sc1' % (vM2, vM, srd(R_WS))]
        return out
    def acquire(self):
        lab = self.lab('acq'); back = self.lab('back')
        b = self.blk(lab, tail=True)
        b('%s:\nbuffer_inv sc1\ns_waitcnt vmcnt(0)\ns_branch %s' % (lab, back))
        return ['s_cmp_eq_u32 s%d, 0' % sLocal, 's_cbranch_scc1 %s' % lab, back + ':']

    def at_dma(self, kpart=True, vpart=True, m0=None):
        out = []
        def m0set(off):
            if m0 is None: return ['s_add_u32 m0, s%d, %d' % (sOld, off)]
            return ['s_add_u32 m0, s%d, %d' % (sMW, m0 + off)]
        if kpart:
            out.append(m0set(0))
            for i in range(4):
                out.append(['buffer_load_dwordx4 v%d, %s, s%d offen offset:%d %s lds @kv' % (vL16, srd(R_WS), sK, i * 1024, self.opt.get('kvf', 'sc1').replace('-', ''))])
            out[-1].append('s_add_u32 s%d, s%d, 16384' % (sK, sK))
        if vpart:
            out.append(m0set(16384))
            for i in range(4):
                out.append(['buffer_load_dwordx4 v%d, %s, s%d offen offset:%d %s lds @kv' % (vL16, srd(R_WS), sV, i * 1024, self.opt.get('kvf', 'sc1').replace('-', ''))])
            out[-1].append('s_add_u32 s%d, s%d, 16384' % (sV, sV))
        return self.merge_m0(out)
    def at_rotate(self):
        return (['s_add_u32 s%d, s%d, s%d' % (sOld, sR, sMW), 's_add_u32 s%d, s%d, 32768' % (sR, sR),
                 's_cmp_eq_u32 s%d, 98304' % sR, 's_cselect_b32 s%d, 0, s%d' % (sR, sR)],
                ['v_add_u32 v%d, s%d, v%d' % (vRd, sR, vL16)])

    def start_check(self):
        chk = ['v_and_b32 v%d, 0x80808080, v%d' % (vM, vT), 'v_cmp_ne_u32 vcc, 0x80808080, v%d' % vM, 's_cmp_eq_u64 vcc, 0']
        back = self.lab('back')
        lab = self.spin(['v_lshrrev_b32 v%d, 2, v%d' % (vT, vL16), 'buffer_load_dword v%d, v%d, %s, 0 offen sc1' % (vT, vT, srd(R_DBG))], chk, back)
        return [chk + ['s_cbranch_scc0 %s' % lab, back + ':'],
                ['s_and_b32 s94, s%d, 3' % sX, 's_lshl_b32 s94, s94, 3', 'v_bfe_u32 v%d, v%d, s94, 8' % (vM, vT)],
                ['s_lshr_b32 s94, s%d, 2' % sX, 's_lshl_b32 s94, 0x55555555, s94', 'v_cmp_ne_u32 vcc, s%d, v%d' % (sXcc, vM)],
                ['s_or_b32 s95, vcc_lo, vcc_hi', 's_and_b32 s95, s95, s94', 's_cselect_b32 s%d, 0, 1' % sLocal]]
    def token_ops(self):
        K = 240
        out = ['v_max3_u32 v%d, v%d, v%d, v%d' % (K, K, K + 1, K + 2)]
        for i in range(K + 3, K + 15, 2): out.append('v_max3_u32 v%d, v%d, v%d, v%d' % (K, K, i, i + 1))
        out.append('v_max_u32 v%d, v%d, v%d' % (K, K, K + 15))
        for dpp in ('quad_perm:[1,0,3,2]', 'quad_perm:[2,3,0,1]', 'row_half_mirror', 'row_mirror'):
            out.append('s_nop 0\nv_max_u32_dpp v%d, v%d, v%d %s row_mask:0xf bank_mask:0xf' % (K, K, K, dpp))
        for sw in ('v_permlane32_swap_b32', 'v_permlane16_swap_b32'):
            out += ['v_mov_b32 v%d, v%d' % (K + 1, K), 's_nop 0\n%s v%d, v%d' % (sw, K, K + 1), 'v_max_u32 v%d, v%d, v%d' % (K, K, K + 1)]
        out += ['v_and_b32 v%d, 0x7ff, v%d' % (K + 1, K), 'v_sub_u32 v%d, 0x7ff, v%d' % (K + 1, K + 1), 'v_and_b32 v%d, 0xfffff800, v%d' % (K, K),
                'v_readfirstlane_b32 s%d, v%d' % (sTok, K + 1), 'v_not_b32 v%d, v%d' % (K + 2, K), 'v_ashrrev_i32 v%d, 31, v%d' % (K + 2, K + 2),
                'v_or_b32 v%d, 0x80000000, v%d' % (K + 2, K + 2), 'v_xor_b32 v%d, v%d, v%d' % (K, K, K + 2),
                'v_mul_f32 v%d, 0xbfb8aa3b, v%d' % (K, K), 'v_exp_f32 v%d, v%d' % (K, K), 'v_add_f32 v%d, 1.0, v%d' % (K, K),
                'v_rcp_f32 v%d, v%d' % (K, K), 'v_readfirstlane_b32 s%d, v%d' % (sRsel, K)]
        return out
    @staticmethod
    def ffw(m, i):
        n = 9 * m + i
        return ('a', 192 + 4 * n) if n < 16 else ('v', (240, 8)[n - 16])
    @staticmethod
    def ffd(i): return ('a', 224 + 4 * i) if i < 8 else ('v', (240, 192, 196)[i - 8])
    @staticmethod
    def ffx(i): return i if i < 8 else 12
    FS = LDS_BYTES - 1024
    def ffn_scalars(self):
        return ['s_sub_u32 s%d, s2, 112' % sA, 's_lshr_b32 s%d, s%d, 3' % (sA, sA), 's_mul_i32 s%d, s%d, 18' % (sB, sX),
                's_add_u32 s%d, s%d, s%d' % (sA, sA, sB), 's_lshl_b32 s%d, s%d, 6' % (sA, sA),
                's_cmp_ge_u32 s2, %d\ns_cselect_b32 s%d, s%d, 0x40000000' % (self.ffwg, sFf, sA)]
    def warm_loads(self):
        out = []
        if 'nopfo' not in self.opt:
            out.append(['s_lshl_b32 s94, s%d, 5' % sX, 's_lshr_b32 s95, s2, 3', 's_add_u32 s94, s94, s95', 's_lshl_b32 s94, s94, 2', 's_add_u32 s94, s94, s%d' % sW,
                        's_mul_i32 s94, s94, 4608', 'v_lshlrev_b32 v12, 3, v%d' % vL16, 'v_min_u32 v12, 0x1180, v12',
                        'buffer_load_dword v0, v12, %s, s94 offen @pf' % srd(R_WO)])
        if 'nopff' not in self.opt:
            out.append(['s_lshr_b32 s95, s2, 3', 's_lshl_b32 s95, s95, 2', 's_add_u32 s95, s95, s%d' % sW, 's_mul_i32 s95, s95, 41',
                        'v_lshrrev_b32 v12, 4, v%d' % vL16, 'v_min_u32 v12, 40, v12', 'v_add_u32 v12, s95, v12', 'v_min_u32 v12, 0x143f, v12',
                        'v_lshlrev_b32 v11, 7, v12', 's_mul_i32 s94, s%d, %d' % (sX, 576 * 1152),
                        'buffer_load_dword v0, v11, %s, s94 offen @pf' % srd(R_WD)])
            out.append(['v_mul_u32_u24 v12, 0x1c72, v12', 'v_lshrrev_b32 v12, 16, v12', 'v_mul_u32_u24 v12, 0x1f80, v12', 'v_add_u32 v11, v11, v12',
                        's_mul_i32 s%d, s%d, 1152' % (sA, sX), 'buffer_load_dword v0, v11, %s, s%d offen @pf' % (srd(R_WG), sA)])
            out.append(['buffer_load_dword v0, v11, %s, s%d offen @pf' % (srd(R_WU), sA)])
        return out
    def ffn_loads(self):
        pre = ['v_lshrrev_b32 v9, 6, v%d' % vL16, 's_mul_i32 s94, s%d, 144' % sW, 'v_add_u32 v9, s94, v9', 'v_and_b32 v8, 0x30, v%d' % vL16,
               'v_mul_u32_u24 v11, 0x2400, v9', 'v_add_u32 v8, v8, v11', 'v_lshlrev_b32 v9, 1, v9', 's_mul_i32 s%d, s%d, 1152' % (sA, sTok),
               's_mov_b32 s%d, s%d' % (sB, sFf)]
        out = []
        for i in range(9):
            out.append(['buffer_load_ushort v%d, v9, %s, s%d offen offset:%d @ff' % (self.ffx(i), srd(R_X), sA, 32 * i)])
            out.append(['buffer_load_dwordx4 %s, v8, %s, s%d offen @ff' % (rr(self.ffw(0, i)), srd(R_WG), sB)])
            out.append(['buffer_load_dwordx4 %s, v8, %s, s%d offen @ff' % (rr(self.ffw(1, i)), srd(R_WU), sB), 's_add_u32 s%d, s%d, %d' % (sB, sB, 16 * 9216)])
        out[0] = pre + out[0]
        return out[:15], out[15:]
    def ffn_a(self, b):
        lab = self.lab('ffa'); back = self.lab('back')
        b('s_cmp_ge_u32 s2, %d\ns_cbranch_scc1 %s\n%s:' % (self.ffwg, lab, back))
        t = self.blk(lab, tail=True)
        t(lab + ':\ns_waitcnt vmcnt(16)')
        A = vU
        for e in range(16): t('v_mov_b32 v%d, 0' % (A + e))
        for i in range(9):
            x = self.ffx(i)
            t('v_lshlrev_b32 v%d, 16, v%d' % (vM, x))
            for m in range(2):
                w = self.ffw(m, i)
                if w[0] == 'a':
                    for d in range(4): t('v_accvgpr_read_b32 v%d, a%d' % (192 + 4 * m + d, w[1] + d))
                    w = ('v', 192 + 4 * m)
                for d in range(4):
                    t('v_dot2_f32_bf16 v%d, v%d, v%d, v%d' % (A + 8 * m + 2 * d, w[1] + d, x, A + 8 * m + 2 * d))
                    t('v_dot2_f32_bf16 v%d, v%d, v%d, v%d' % (A + 8 * m + 2 * d + 1, w[1] + d, vM, A + 8 * m + 2 * d + 1))
        t('s_mul_i32 s%d, s%d, 576\ns_mul_i32 s94, s%d, 288\ns_add_u32 s%d, s%d, s94' % (sA, sFf, sW, sA, sA))
        dl = ['buffer_load_dwordx4 %s, v%d, %s, s%d offen\ns_add_u32 s%d, s%d, 3456' % (rr(self.ffd(i)), vWo[0], srd(R_WD), sA, sA, sA) for i in range(11)]
        ops = ['v_permlane32_swap_b32 v%d, v%d' % (A + e, A + 8 + e) for e in range(8)]
        ops += ['v_add_f32 v%d, v%d, v%d' % (A + e, A + e, A + 8 + e) for e in range(8)]
        ops += ['v_permlane16_swap_b32 v%d, v%d' % (A + e, A + 4 + e) for e in range(4)]
        ops += ['v_add_f32 v%d, v%d, v%d' % (A + e, A + e, A + 4 + e) for e in range(4)]
        for dpp in ('row_ror:4', 'row_ror:8'):
            ops += ['v_add_f32_dpp v%d, v%d, v%d %s row_mask:0xf bank_mask:0xf' % (A + e, A + e, A + e, dpp) for e in range(4)]
        ops += ['v_lshrrev_b32 v9, 9, v%d' % vL16, 'v_lshlrev_b32 v9, 7, v9', 'v_bfe_u32 v10, v%d, 8, 1' % vL16, 'v_lshl_add_u32 v9, v10, 4, v9',
                'v_and_b32 v10, 0x30, v%d' % vL16, 'v_lshl_add_u32 v9, v10, 1, v9', 's_lshl_b32 s94, s%d, 8' % sW, 's_add_u32 s94, s94, %d' % self.FS,
                'v_add_u32 v9, s94, v9', 'ds_write_b128 v9, %s' % v4(A)]
        for i, o in enumerate(ops):
            if i % 4 == 0 and dl: t(dl.pop(0))
            t(o)
        assert not dl
        t('s_waitcnt lgkmcnt(0)\ns_branch %s' % back)
    def ffn_b(self, b):
        lab = self.lab('ffb'); back = self.lab('back')
        b('s_cmp_ge_u32 s2, %d\ns_cbranch_scc1 %s\n%s:' % (self.ffwg, lab, back))
        t = self.blk(lab, tail=True)
        t(lab + ':')
        A = vU
        t('v_bfe_u32 v9, v%d, 4, 5\nv_lshlrev_b32 v9, 2, v9\nv_add_u32 v9, %d, v9' % (vL16, self.FS))
        for wv in range(4): t('ds_read_b32 v%d, v9 offset:%d\nds_read_b32 v%d, v9 offset:%d' % (wv, 256 * wv, 4 + wv, 256 * wv + 128))
        t('v_lshrrev_b32 v10, 4, v%d\nv_mul_u32_u24 v11, 0xe39, v10\nv_lshrrev_b32 v11, 16, v11\nv_cmp_gt_u32 vcc, 54, v10\nv_mov_b32 v12, 32' % vL16)
        t('v_lshlrev_b32 v13, 5, v10\nv_cndmask_b32 v11, v12, v11, vcc\nv_add_u32 v13, s%d, v13\nv_lshlrev_b32 v11, 2, v11' % sOld)
        t('s_waitcnt lgkmcnt(0)')
        t('v_add_f32 v0, v0, v1\nv_add_f32 v2, v2, v3\nv_add_f32 v4, v4, v5\nv_add_f32 v6, v6, v7\nv_add_f32 v0, v0, v2\nv_add_f32 v4, v4, v6')
        t('v_mul_f32 v1, 0xbfb8aa3b, v0\nv_exp_f32 v1, v1\nv_cmp_gt_u32 vcc, 32, v10\nv_add_f32 v1, 1.0, v1\nv_rcp_f32 v1, v1\nv_mul_f32 v0, v0, v4')
        t('v_mul_f32 v0, v0, v1\nv_cvt_pk_bf16_f32 v0, v0, v0\nv_and_b32 v0, 0xffff, v0\nv_cndmask_b32 v0, 0, v0, vcc')
        H = A + 8
        for i in range(8): t('ds_bpermute_b32 v%d, v11, v0 offset:%d' % (1 + i, 12 * i))
        for i in range(8, 11): t('ds_bpermute_b32 v%d, v11, v0 offset:%d' % (H + i - 8, 12 * i))
        for e in range(8): t('v_mov_b32 v%d, 0' % (A + e))
        t('s_waitcnt vmcnt(14) lgkmcnt(0)')
        for i in range(11):
            h = 1 + i if i < 8 else H + i - 8
            t('v_lshlrev_b32 v9, 16, v%d' % h)
            w = self.ffd(i)
            if w[0] == 'a':
                for d in range(4): t('v_accvgpr_read_b32 v%d, a%d' % (208 + d, w[1] + d))
                w = ('v', 208)
            for d in range(4):
                t('v_dot2_f32_bf16 v%d, v%d, v%d, v%d' % (A + 2 * d, w[1] + d, h, A + 2 * d))
                t('v_dot2_f32_bf16 v%d, v%d, v9, v%d' % (A + 2 * d + 1, w[1] + d, A + 2 * d + 1))
        t('v_lshlrev_b32 v11, 2, v10\ns_lshl_b32 s94, s%d, 12\ns_mul_i32 s95, s%d, 576\ns_add_u32 s94, s94, s95\ns_add_u32 s%d, s94, %d' % (sX, sW, sA, YACC))
        t('ds_write_b128 v13, %s\nds_write_b128 v13, %s offset:16\nv_add_u32 v12, s%d, v11' % (v4(A), v4(A + 4), sOld))
        t('v_cmp_gt_u32 vcc, 16, v10\nv_mov_b32 v9, %d\ns_waitcnt lgkmcnt(0)' % OOB)
        for i in range(3):
            for gr in range(3): t('ds_read_b32 v%d, v12 offset:%d' % (3 * i + gr, 256 * i + 576 * gr))
        t('v_cndmask_b32 v9, v9, v11, vcc\ns_waitcnt lgkmcnt(0)')
        for i in range(3):
            t('v_add_f32 v%d, v%d, v%d\nv_add_f32 v%d, v%d, v%d' % (3 * i, 3 * i, 3 * i + 1, 3 * i, 3 * i, 3 * i + 2))
            t('buffer_atomic_add_f32 v%d, v%d, %s, s%d offen offset:%d' % (3 * i, 11 if i < 2 else 9, srd(R_WS), sA, 256 * i))
        t('s_branch ' + back)

    def q_phase(self):
        b = self.blk('q')
        b('L_q:')
        b.autowait()
        for t in self.stamp(2): b(t)
        fill = []
        fill += ['v_add_u32 v%d, 0x10000, v%d' % (vRX2[0], vRC[0]), 'v_add_u32 v%d, 0x10000, v%d' % (vRX2[1], vRC[1])]
        zero = ['v_accvgpr_write_b32 a%d, 0' % i for i in range(128)]
        late = []
        late += ['v_mov_b32 v%d, 0x3f803f80' % (vOne + i) for i in range(4)]
        late2 = ['v_mov_b32 v%d, 0' % (lacc_(qt)[1] + i) for qt in range(4) for i in range(4)]
        late += ['v_bfe_u32 v%d, v%d, 4, 4' % (vU, vL16), 'v_lshrrev_b32 v%d, 8, v%d' % (vU + 1, vL16),
                 'v_lshlrev_b32 v%d, 2, v%d' % (vU + 1, vU + 1), 'v_sub_u32 v%d, v%d, v%d' % (vU, vU, vU + 1),
                 'v_mov_b32 v%d, 0x%x' % (vU + 1, BIGN)]
        for r in range(4):
            late += ['v_cmp_gt_i32 vcc, %d, v%d' % (r, vU), 's_nop 1', 'v_cndmask_b32 v%d, 0, v%d, vcc' % (vB + r, vU + 1)]
        late += ['v_lshrrev_b32 v%d, 4, v%d' % (vU, vL16)]
        for i in range(9):
            late += ['v_add_u32 v%d, %d, v%d' % (vU + 1, 64 * i, vU), 'v_mul_u32_u24 v%d, 0xe39, v%d' % (vU + 2, vU + 1),
                     'v_lshrrev_b32 v%d, 16, v%d' % (vU + 2, vU + 2), 'v_mul_u32_u24 v%d, 0x360, v%d' % (vU + 2, vU + 2),
                     'v_lshl_add_u32 v%d, v%d, 4, v%d' % (vWo[i], vU + 1, vU + 2)]
            if i & 3: late += ['v_subrev_u32 v%d, %d, v%d' % (vWo[i], (i & 3) * 1024, vWo[i])]
        late += ['v_lshrrev_b32 v%d, 2, v%d' % (vU + 1, vU), 'v_mul_u32_u24 v%d, 0x120, v%d' % (vU + 1, vU + 1),
                 'v_and_b32 v%d, 3, v%d' % (vU + 2, vU), 'v_lshl_add_u32 v%d, v%d, 3, v%d' % (vRO[1], vU + 2, vU + 1),
                 'v_add_u32 v%d, %d, v%d' % (vRO[0], WK0, vRO[1]), 'v_add_u32 v%d, %d, v%d' % (vRO[2], 7 * 9216, vRO[1])]
        span = int(self.opt.get('stspan', 12)) * 32
        sts = []
        for n in range(24):
            g = 8 + n * span // 24
            sts.append((g // 32, (g % 32) // 4 * 4 + 3))
        kpub = 15 if span <= 12 * 32 else 17
        k0 = sts[7][0] + 1; k1 = sts[11][0] + 1
        carry = []
        osc = self.o_scalars() + self.ffn_scalars()
        assert len(osc) <= 90
        for k in range(18):
            s = k >> 1; last = k == 17
            order = [(i, qt) for i in range(8) for qt in range(4)]
            if last: order = [(i, qt) for qt in range(4) for i in range(8)]
            ms = [mfma(qacc(i, qt), self.qwfrag(k, i), self.qxfrag(k, qt), '0' if k == 0 else qacc(i, qt)) for (i, qt) in order]
            gaps = [[] for _ in range(32)]
            pos = 0
            if k & 1:
                w = 'WAIT q%d:0 lgkm0' % (s + 1) if s < 8 else 'WAIT kv:1 lgkm0'
                if k == 3: w += ' kvs0:0'
                if k == kpub: w += ' kvs1:0'
                gaps[0] += self.stamp('qa%d' % s) + [w, 's_barrier'] + self.stamp('qb%d' % s)
                pos = 1
                if k == 3: gaps[1] += self.publish(F_KV, True); pos = 2
                if k == kpub: gaps[1] += self.publish(F_KV2, True); pos = 2
                if s <= 5: carry = self.merge_m0(self.q_dma(s + 3)) + [self.kv_dma_adv()[:2], self.kv_dma_adv()[2:]]
                elif s == 6: carry = self.at_dma(True, False, XC)
                elif s == 7: carry = self.at_dma(True, True, XA)
                else: carry = self.at_dma(True, True, XB)
            if k == k0: late += zero; zero = []
            if k == 0:
                for i, grp in enumerate(self.start_check()): gaps[22 + i] += grp
            if k == k1:
                gaps[27] += ['s_mov_b32 s%d, %d' % (sA, KEYB)]
                for i in range(4): gaps[28 + i] = ['buffer_load_dwordx4 %s, v%d, %s, s%d offen offset:%d sc1' % (v4(240 + 4 * i), vL16, srd(R_WS), sA, 1024 * i)] + gaps[28 + i]
            if k == k1 + 4: late[0:0] = self.token_ops() + late2
            if k == 8:
                fa = self.flag_addr(vPoll, F_KV, ['s_and_b32 s94, s2, 31'], 8, 32)
                gaps[28] += fa[:5]; gaps[29] += fa[5:]
                self.kvpoll = self.poll(vPoll, vT, 8)
                gaps[30] = self.kvpoll[0] + gaps[30]
            if k == 12:
                gaps[26] += self.kvpoll[1] + self.acquire()
                gaps[28] += ['s_lshl_b32 s%d, s%d, 19' % (sK, sH), 's_add_u32 s%d, s%d, s%d' % (sK, sK, sMW)]
                gaps[29] += ['s_add_u32 s%d, s%d, %d' % (sV, sK, VBUF - KBUF), 's_mov_b32 s%d, %d' % (sR, XC)]
                gaps[30] += ['v_add_u32 v%d, %d, v%d' % (vRd, XC, vL16)]
            rd = self.q_reads(k + 1) if not last else [self.k_read(n, n >> 2, n & 3) for n in range(8)]
            g = pos; nd = 7 if (k & 1) else 99
            while rd or (carry and nd):
                if carry and nd and (g % 4 == 1 or not rd):
                    gaps[g] = carry.pop(0) + gaps[g]; nd -= 1
                else:
                    gaps[g].insert(0, rd.pop(0))
                g += 1
            assert g <= 30, (k, g)
            if 'nost' not in self.opt:
                for n, (kk, g) in enumerate(sts):
                    if kk == k: gaps[g] = self.kv_store(8 + n) + gaps[g]
            if last:
                self.q_carry = carry
            if k in (2, 4, 5):
                for g in range(2, 32):
                    if osc: gaps[g].insert(0, osc.pop(0))
            src = fill if k < 2 else (late if k >= k0 else zero)
            if not last:
                for g in range(1, 32):
                    if src and not any(t.startswith('buffer') or t.startswith('s_c') or t.startswith('v_') for t in gaps[g]):
                        t = src.pop(0)
                        gaps[g].append(t)
                        if t.startswith('v_cmp'):
                            gaps[g] += [src.pop(0), src.pop(0)]
            else:
                assert not late and not fill
                ep = []
                self.q_ep = []
                for qt in range(4):
                    for ds in range(4):
                        x, y = qacc(2 * ds, qt)[1], qacc(2 * ds + 1, qt)[1]
                        ops = ['v_mul_f32 v%d, 0x%x, v%d' % (r, QSCALE, r) for r in list(range(x, x + 4)) + list(range(y, y + 4))]
                        ops += ['v_cvt_pk_bf16_f32 v%d, v%d, v%d' % (x, x, x + 1), 'v_cvt_pk_bf16_f32 v%d, v%d, v%d' % (x + 1, x + 2, x + 3),
                                'v_cvt_pk_bf16_f32 v%d, v%d, v%d' % (x + 2, y, y + 1), 'v_cvt_pk_bf16_f32 v%d, v%d, v%d' % (x + 3, y + 2, y + 3)]
                        ep += [(qt * 8 + 2 * ds + 1, t) for t in ops]
                for g in range(32):
                    n = 3
                    while n and ep and ep[0][0] + 4 <= g:
                        gaps[g].append(ep.pop(0)[1]); n -= 1
                self.q_ep = [t for (_, t) in ep]
            x = self.opt.get('qx', '')
            if k < 12:
                gaps = [[t for t in gp if not (('d' in x and t.startswith('buffer_load_dwordx4') and 'lds' in t) or ('r' in x and t.startswith('ds_read'))
                                               or ('v' in x and t.startswith('v_accvgpr_write')) or ('x' in x and t.startswith('buffer_load_dwordx4') and srd(R_X) in t))] for gp in gaps]
            emit_gaps(b, ms, gaps)
        return b

    def k_read(self, n, kt, ds): return 'ds_read_b128 %s, v%d offset:%d' % (rr(fifo(n)), vRd, (kt * 4 + ds) * 1024)
    def v_read(self, n, ks, dt): return 'ds_read_b128 %s, v%d offset:%d' % (rr(fifo(n)), vRd, 16384 + (ks * 8 + dt) * 1024)

    def qk_step(self, mode, par, half, n0, masked, first=False):
        ms, fr, inits = [], [], []
        if mode == 'd':
            tiles = [(kt, qt) for kt in range(2) for qt in (2, 3, 0, 1)]
            if first: tiles = [(kt, qt) for qt in range(4) for kt in range(2)]
            nk = 2
        else:
            tiles = [(kt, qt) for kt in range(4) for qt in (2, 3)]; nk = 4
        use = {}
        for (kt, qt) in tiles:
            S = stile(mode, par, kt, qt)
            m = masked and (qt < 2 if mode == 'd' else True)
            if m:
                o = (qt & 1) - kt + 3
                ops = ['v_mov_b32 v%d, s%d' % (vM, sNone[o])] if first else ['v_add_f32 v%d, s%d, v%d' % (vM, sNone[o], negm(qt)[1])]
                ops += ['v_fma_f32 v%d, v%d, s%d, v%d' % (S[1] + r, vB + r, sTri[o], vM) for r in range(4)]
                inits.append((len(ms), ops))
            for ds in range(4):
                c = S if (ds or m) else ('0' if first else negm(qt))
                use.setdefault((kt, ds), []).append(len(ms))
                ms.append(mfma(S, fifo(n0 + kt * 4 + ds), qfrag(qt, ds), c))
        for kt in range(nk):
            for ds in range(4):
                fr.append((self.k_read(n0 + kt * 4 + ds, (2 * half if mode == 'd' else 0) + kt, ds), use[(kt, ds)][0], use[(kt, ds)][-1]))
        return ms, fr, inits
    def pv_step(self, mode, par, half, n0):
        ms, fr = [], []
        for dt in range(8):
            if mode == 'd':
                fr.append((self.v_read(n0 + dt, half, dt), len(ms), len(ms) + 3))
                for qt in range(4):
                    ms.append(mfma(oacc(dt, qt), fifo(n0 + dt), pfrag('d', par, qt, 0), oacc(dt, qt)))
            else:
                for ks in range(2): fr.append((self.v_read(n0 + 2 * dt + ks, ks, dt), len(ms) + ks, len(ms) + 2 + ks))
                for qt in (2, 3):
                    for ks in range(2):
                        ms.append(mfma(oacc(dt, qt), fifo(n0 + 2 * dt + ks), pfrag('s', par, qt, ks), oacc(dt, qt)))
        return ms, fr, []
    def pairs(self, mode, par):
        out = []
        for qt in (range(4) if mode == 'd' else (2, 3)):
            first = True
            for ks in range(1 if mode == 'd' else 2):
                P = pfrag(mode, par, qt, ks)[1]
                for h in range(2):
                    S = stile(mode, par, 2 * ks + h, qt)[1]
                    for e in range(2):
                        out.append((qt, first, S + 2 * e, P + 2 * h + e)); first = False
        return out
    def softmax(self, mode, par):
        g = [[] for _ in range(68)]
        prs = self.pairs(mode, par)
        for p, (qt, first, S, P) in enumerate(prs):
            g[4 * p].append('v_exp_f32 v%d, v%d' % (vE[0], S))
            g[4 * p + 1].append('v_exp_f32 v%d, v%d' % (vE[1], S + 1))
            g[4 * p + 2].append('v_cvt_pk_bf16_f32 v%d, v%d, v%d' % (P, vE[0], vE[1]))
            if p == 1: g[4 * p + 3].append('v_or_b32 v%d, v%d, v%d' % (vOr, prs[0][3], P))
            elif p & 1: g[4 * p + 3].append('v_or3_b32 v%d, v%d, v%d, v%d' % (vOr, prs[p - 1][3], P, vOr))
        return g
    def ones_step(self, mode, par):
        ms = []
        for qt in (range(4) if mode == 'd' else (2, 3)):
            for ks in range(1 if mode == 'd' else 2):
                ms.append(mfma(lacc_(qt), ('v', vOne), pfrag(mode, par, qt, ks), lacc_(qt)))
        return ms, [], []
    def check(self, g, mode, par, nxt):
        back = self.lab('back'); tr = self.lab('tr')
        t = self.blk(tr, tail=True)
        t('%s:\ns_call_b64 s[%d:%d], %s\ns_branch %s' % (tr, sRet, sRet + 1, self.rare(mode, par, nxt), back))
        g[64] += ['v_and_b32 v%d, 0x40004000, v%d' % (vOr, vOr), 'v_cmp_ne_u32 vcc, 0, v%d' % vOr]
        g[67] += ['s_cbranch_vccnz %s' % tr, back + ':']
    def rowmax(self, b, regs, dst, t):
        b('v_max3_f32 v%d, v%d, v%d, v%d' % (dst, regs[0], regs[1], regs[2]))
        regs = regs[3:]
        while len(regs) >= 2:
            b('v_max3_f32 v%d, v%d, v%d, v%d' % (dst, dst, regs[0], regs[1])); regs = regs[2:]
        if regs: b('v_max_f32 v%d, v%d, v%d' % (dst, dst, regs[0]))
        self.xlane(b, 'v_max_f32', dst, t)
    def xlane(self, b, op, dst, t):
        for sw in ('v_permlane32_swap_b32', 'v_permlane16_swap_b32'):
            b('v_mov_b32 v%d, v%d\ns_nop 1\n%s v%d, v%d\n%s v%d, v%d, v%d' % (t, dst, sw, dst, t, op, dst, dst, t))
    def sregs(self, mode, par, qt):
        return [stile(mode, par, kt, qt)[1] + r for kt in range(2 if mode == 'd' else 4) for r in range(4)]
    def rare(self, mode, par, nxt):
        key = 'L_rare_%s%d%s' % (mode, par, nxt or 'n')
        if key in self.rares: return key
        self.rares[key] = b = self.blk(key, tail=True)
        b(key + ':\ns_nop 7\ns_nop 1')
        d, f, t = vU, vU + 1, vU + 2
        for qt in (range(4) if mode == 'd' else (2, 3)):
            sr = self.sregs(mode, par, qt)
            self.rowmax(b, sr, d, t)
            b('v_add_f32 v%d, 0x%x, v%d' % (d, TREF, d))
            b('v_max_f32 v%d, 0, v%d\nv_sub_f32 v%d, 0, v%d\nv_exp_f32 v%d, v%d' % (d, d, f, d, f, f))
            for r in range(4): b('v_sub_f32 v%d, v%d, v%d' % (negm(qt)[1] + r, negm(qt)[1] + r, d))
            for r in range(4): b('v_mul_f32 v%d, v%d, v%d' % (lacc_(qt)[1] + r, lacc_(qt)[1] + r, f))
            for dt in range(8):
                o = oacc(dt, qt)[1]
                for r in range(4): b('v_accvgpr_read_b32 v%d, a%d' % (t + r, o + r))
                for r in range(4): b('v_mul_f32 v%d, v%d, v%d' % (t + r, t + r, f))
                for r in range(4): b('v_accvgpr_write_b32 a%d, v%d' % (o + r, t + r))
            for r in sr: b('v_sub_f32 v%d, v%d, v%d' % (r, r, d))
            if nxt and (nxt == 'd' or qt >= 2):
                for r in self.sregs(nxt, par ^ 1, qt): b('v_sub_f32 v%d, v%d, v%d' % (r, r, d))
        for (qt, first, S, P) in self.pairs(mode, par):
            b('v_exp_f32 v%d, v%d\nv_exp_f32 v%d, v%d\ns_nop 0' % (vE[0], S, vE[1], S + 1))
            b('v_cvt_pk_bf16_f32 v%d, v%d, v%d' % (P, vE[0], vE[1]))
        b('s_nop 1\ns_setpc_b64 s[%d:%d]' % (sRet, sRet + 1))
        return key
    def mask_scalars(self, offs):
        out = []
        for o in offs:
            out += [['s_cmp_eq_i32 s%d, %d' % (sD, -o), 's_cselect_b32 s%d, 1.0, 0' % sTri[o + 3]],
                    ['s_cmp_lt_i32 s%d, %d' % (sD, -o), 's_cselect_b32 s%d, 0x%x, 0' % (sNone[o + 3], BIGN)]]
        return out

    def at_block(self, name, steps, sm, nxt_reads, bar, dma, extra=None, pre=None, nl_in=6, wait='WAIT kv:1 lgkm0', post_bar=None, dma_all=False):
        b = self.blk(name)
        ms, fr, inits = [], [], []
        for (m, f, ini) in steps:
            fr += [(t, u0 + len(ms), u1 + len(ms)) for (t, u0, u1) in f]
            inits += [(u + len(ms), ops) for (u, ops) in ini]
            ms += m
        G = len(ms)
        gaps = [list(x) for x in sm]
        assert len(gaps) == G
        front = [[] for _ in range(G)]
        def vcost(g): return sum(8 if t.startswith('v_exp') else 4 for t in gaps[g] if t.startswith('v_'))
        def busy(g): return any(not t.startswith('s_') and not t.startswith('WAIT') for t in front[g])
        if bar is not None:
            sc, vc = self.at_rotate()
            for i, t in enumerate(sc[:2]): front[bar - 3 + i].insert(0, t)
            front[bar - 1] = sc[2:] + front[bar - 1]
            gaps[bar - 1] = gaps[bar - 1] + vc
            front[bar] = [wait, 's_barrier'] + (post_bar or []) + front[bar]
            cand = sorted(sorted(range(bar, G), key=lambda x: (vcost(x) > 4, x))[:max(len(nxt_reads), len([x for x in range(bar, G) if vcost(x) <= 4]))])
            for i, t in enumerate(nxt_reads):
                n = len(fr) + i
                g = cand[i * len(cand) // len(nxt_reads)]
                assert g >= bar and (n < 16 or g >= fr[n - 16][2]), (name, n)
                front[g].append(t)
        real = [x for x in dma if not x[0].startswith('s_')]
        lim = min(bar - 2 if (bar is not None and not dma_all) else G, int(self.opt.get('atsp', 8)) * len(real))
        prev = -1; i = 0
        for grp in dma:
            if grp[0].startswith('s_'):
                front[prev + 1] += grp; prev += 1; continue
            tgt = 2 + i * (lim - 2) // len(real); i += 1
            x = min([x for x in range(prev + 1, G) if not busy(x)], key=lambda x: abs(x - tgt) + 0.8 * vcost(x))
            front[x] += grp; prev = x
        own = fr[nl_in:]
        LAT = int(self.opt.get('lat', 6))
        lim = (bar - int(self.opt.get('barlat', 5))) if bar is not None else G - 1
        INF = 1e9
        n_own = len(own)
        best = [[INF] * (G + 2) for _ in range(n_own + 1)]; take = [[False] * (G + 2) for _ in range(n_own + 1)]
        for g in range(G + 2): best[n_own][g] = 0
        for i in range(n_own - 1, -1, -1):
            t, u0, u1 = own[i]; n = i + nl_in
            free = max(fr[n - 16][2] if n >= 16 else 0, 0); dl = min(u0 - LAT, lim)
            for g in range(G - 1, -1, -1):
                best[i][g] = best[i][g + 1]
                if free <= g <= dl and not busy(g):
                    c = max(0, vcost(g) + 4 - 8) - max(0, vcost(g) - 8) + 0.01 * g + best[i + 1][g + 1]
                    if c <= best[i][g]: best[i][g] = c; take[i][g] = True
        assert best[0][0] < INF, name
        g = 0
        for i in range(n_own):
            while not take[i][g]: g += 1
            front[g].append(own[i][0]); g += 1
        prel = list(pre or [])
        for (u, ops) in inits:
            if u < 4: prel += ops
            else:
                gaps[u - 4] += ops[:2]; gaps[u - 3] += ops[2:]
        if prel and inits and inits[0][0] < 4: prel.append('s_nop 1')
        for (g, ops) in (extra or []):
            if ops[-1].startswith('buffer'): front[g] = front[g] + ops
            elif ops[0].startswith('s_') and not ops[0].startswith('s_cbranch'): front[g] = ops + front[g]
            else: gaps[g] = gaps[g] + ops
        if name in ('L_dp', 'L_sp', 'L_sp1'):
            x = self.opt.get('x', '')
            def keep(t):
                if 'd' in x and t.startswith('buffer_load'): return False
                if 'b' in x and t.startswith('s_barrier'): return False
                if 'w' in x and t.startswith('WAIT'): return False
                if 'c' in x and (t.startswith('s_cbranch_vccnz') or t.startswith('v_cmp_lt_f32') or t.startswith('v_max')): return False
                if 'r' in x and t.startswith('ds_read'): return False
                if 'e' in x and t.startswith('v_exp'): return False
                if 'v' in x and t.startswith('v_') and not t.startswith('v_cmp'): return False
                return True
            front = [[t for t in f if keep(t)] for f in front]; gaps = [[t for t in f if keep(t)] for f in gaps]
        b(name + ':')
        for t in self.stamp(name): b(t)
        emit_gaps(b, ms, [front[g] + gaps[g] for g in range(G)], pre=prel)
        return b

    def finalize(self, qts, blk_expr, tag, lead=0):
        out = [(0, t) for t in blk_expr]
        out += [(0, t) for t in ('s_lshl_b32 s95, s%d, 4' % sH, 's_add_u32 s94, s94, s95', 's_lshl_b32 s94, s94, 15', 's_add_u32 s94, s94, s%d' % sMC,
                                 's_add_u32 s%d, s94, %d' % (sT0, CTXB), 's_add_u32 s%d, s94, %d' % (sT1, CTXB + 4096))]
        out += [(lead, 'v_rcp_f32 v%d, v%d' % (lacc_(qt)[1], lacc_(qt)[1])) for qt in qts]
        for ks in range(4):
            for qi, qt in enumerate(qts):
                L = lacc_(qt)[1]
                t = vU + 8 * qi
                o = oacc(2 * ks, qt)[1]; e = 8 * ks + 12 + lead // 2
                out += [(e, 'v_accvgpr_read_b32 v%d, a%d' % (t + r, o + r)) for r in range(8)]
                out += [(e, 'v_mul_f32 v%d, v%d, v%d' % (t + r, t + r, L)) for r in range(8)]
                q = qfrag(qt, ks)[1]
                out += [(e, 'v_cvt_pk_bf16_f32 v%d, v%d, v%d' % (q + r, t + 2 * r, t + 2 * r + 1)) for r in range(4)]
                out.append((e, 'buffer_store_dwordx4 %s, v%d, %s, s%d offen offset:%d %s @%s' % (v4(q), vL16, srd(R_WS), sT0 + qi, ks * 1024, self.opt.get('cxf', 'sc1').replace('-', ''), tag)))
        return out

    def attention(self):
        self.rares = {}
        E = lambda n: [[] for _ in range(n)]
        vnext_d = [self.v_read(n, 0, n) for n in range(6)]
        knext_s = [self.k_read(n, n >> 2, n & 3) for n in range(6)]
        p0 = self.blk('pro0')
        for t in self.stamp(3): p0(t)
        p0('s_lshl_b32 s%d, s%d, 3\ns_lshl_b32 s94, s%d, 1\ns_add_u32 s%d, s%d, s94' % (sD, sJ, sW, sD, sD))
        for g in self.mask_scalars((-1, 0, 1)):
            for t in g: p0(t)
        ms, fr, inits = self.qk_step('d', 0, 0, 0, True, first=True)
        ep = list(self.q_ep)
        lim = len(ep) - 2 * 48 if len(ep) > 2 * 48 else 0
        p0('s_nop 4')
        for t in ep[:lim]: p0(t)
        ep = ep[lim:]
        gaps = E(32)
        carry = list(self.q_carry)
        later = [self.k_read(8 + n, 2 + (n >> 2), n & 3) for n in range(8)]
        pre = inits[0][1] + ['s_nop 1']
        for (u, ops) in inits[1:]: gaps[u - 3] += ops
        for g in range(32):
            if g < 12:
                for _ in range(4):
                    if ep: gaps[g].append(ep.pop(0))
            elif g % 2 == 0 and ep:
                pass
        for g in range(12, 22):
            for _ in range(5):
                if ep: gaps[g].append(ep.pop(0))
        assert not ep
        for g in range(22, 30): gaps[g].insert(0, later.pop(0))
        g = 0
        for grp in carry:
            gaps[g] = grp + gaps[g]; g += 2
        fld = self.warm_loads()
        gaps[31] += ['v_add_u32 v%d, 0x4000, v%d' % (vPoll, vPoll)]
        p0.autowait()
        emit_gaps(p0, ms, gaps, pre=pre)
        for t in self.stamp('p0b'): p0(t)
        ld2, chk2 = self.poll(vPoll, vT, 8)
        for t in ld2: p0(t)
        def ff(n):
            for _ in range(n):
                if fld:
                    for t in fld.pop(0): p0(t)
        for qt in range(4):
            sr = self.sregs('d', 0, qt)
            ff(1)
            self.rowmax(p0, sr, vU, vU + 1)
            p0('v_add_f32 v%d, 0x%x, v%d' % (vU, TREF, vU))
            for r in range(4): p0('v_sub_f32 v%d, 0, v%d' % (negm(qt)[1] + r, vU))
            for r in sr: p0('v_sub_f32 v%d, v%d, v%d' % (r, r, vU))
        p0('s_sub_u32 s%d, s%d, 2' % (sD, sD))
        for g in self.mask_scalars((-1, 0, 1)):
            for t in g: p0(t)
        sm0 = self.softmax('d', 0)
        for g in range(32):
            for t in sm0[g]: p0(t)
            if g % 4 == 1: p0('s_nop 0')
        p0.autowait()
        s1 = self.qk_step('d', 1, 1, 8, True)
        p1 = self.at_block('L_pro1', [s1], sm0[32:64], vnext_d, 11, fld, nl_in=8, dma_all=True,
                           extra=[(20, ['s_lshl_b32 s%d, s%d, 1' % (sCnt, sJ)]), (21, ['s_sub_u32 s%d, s%d, 2' % (sD, sD)])],
                           wait='WAIT kv:1 lgkm0')
        p1.autowait()
        for t in self.stamp('p1a'): p1(t)
        for t in chk2 + self.acquire(): p1(t)
        for t in self.stamp('p1b'): p1(t)
        p1('s_cmp_eq_u32 s%d, 0\ns_cbranch_scc1 L_dd_one' % sJ)
        p1('s_sub_u32 s%d, s%d, 1' % (sCnt, sCnt))
        ffl = self.ffn_loads()
        def dual(name, masked):
            w1, w0 = self.softmax('d', 1), self.softmax('d', 0)
            self.check(w1, 'd', 1, 'd'); self.check(w0, 'd', 0, 'd')
            steps = [self.pv_step('d', 0, 0, 0), self.qk_step('d', 0, 0, 8, masked), self.ones_step('d', 0),
                     self.pv_step('d', 1, 1, 16), self.qk_step('d', 1, 1, 24, masked), self.ones_step('d', 1)]
            extra = []
            if masked:
                for base in (8, 76):
                    for i, g in enumerate(self.mask_scalars((-1, 0, 1))): extra.append((base + 2 * i, g))
                    extra.append((base + 14, ['s_sub_u32 s%d, s%d, 2' % (sD, sD)]))
            else:
                extra.append((100, ['s_sub_u32 s%d, s%d, 4' % (sD, sD)]))
            extra.append((124, ['s_sub_u32 s%d, s%d, 1' % (sCnt, sCnt)]))
            dma = self.at_dma() + (self.wo_dma(0, 'wo0') + ffl[0] if masked else [])
            return self.at_block(name, steps, w1 + w0, vnext_d, int(self.opt.get('dbar', 112)), dma, extra=extra, dma_all=masked)
        dp = dual('L_dp', False)
        dp('s_cmp_lg_u32 s%d, 0\ns_cbranch_scc1 L_dp' % sCnt)
        dpx = self.blk('dpx'); dpx('s_mov_b32 s%d, 1\nL_dd_one:\ns_add_u32 s%d, s%d, 1' % (sCnt, sCnt, sCnt))
        dd = dual('L_dd', True)
        dd('s_cmp_lg_u32 s%d, 0\ns_cbranch_scc1 L_dd' % sCnt)
        w1, w0s = self.softmax('d', 1), self.softmax('s', 0)
        self.check(w1, 'd', 1, 's')
        steps = [self.pv_step('d', 0, 0, 0), self.qk_step('s', 0, 0, 8, True), self.ones_step('d', 0), self.ones_step('d', 1), self.pv_step('d', 1, 1, 24)]
        extra = [(2, ['s_lshl_b32 s94, s%d, 4' % sJ, 's_sub_u32 s%d, 112, s94' % sD]), (4, ['s_lshl_b32 s94, s%d, 1' % sW, 's_add_u32 s%d, s%d, s94' % (sD, sD)])]
        for i, g in enumerate(self.mask_scalars(range(-3, 2))): extra.append((6 + 2 * i, g))
        extra.append((74, ['s_sub_u32 s%d, s%d, 4' % (sD, sD)]))
        trn = self.at_block('L_tr', steps, w1 + w0s[:32] + E(4), knext_s, 90, self.at_dma() + ffl[1] + self.wo_dma(1, 'wo0'), extra=extra, dma_all=True)
        fa = self.blk('finA')
        for t in self.stamp(4): fa(t)
        for t in self.finalize((0, 1), ['s_mov_b32 s94, s%d' % sJ], 'ca'): fa(t[1])
        for r in range(16): fa('v_mov_b32 v%d, 0' % (PB + 16 + r))
        for t in self.stamp('fa1'): fa(t)
        self.ffn_a(fa)
        for t in self.stamp('fa2'): fa(t)
        for t in self.wo7_setup(): fa(t)
        fa('s_lshl_b32 s94, s%d, 1\ns_sub_u32 s%d, 13, s94' % (sJ, sCnt))
        for t in self.flag_addr(vPoll, F_CA, ['s_and_b32 s94, s2, 0xe7'], 4, 8): fa(t)
        fa('s_cmp_eq_u32 s%d, 7\ns_cbranch_scc1 L_pub7' % sJ)
        pub7 = self.blk('pub7', tail=True)
        pub7('L_pub7:\nWAIT ca:0\ns_barrier')
        for t in self.publish(F_CA, False): pub7(t)
        for g in self.mask_scalars(range(-3, 2)):
            for t in g: pub7(t)
        pub7('s_branch L_s3')
        def single(name, par, masked, dma, nxt, next_masked=False, extra=(), **kw):
            wa, wb = self.softmax('s', par), self.softmax('s', par ^ 1)
            self.check(wa, 's', par, 's')
            steps = [self.qk_step('s', par ^ 1, 0, 0, masked), self.ones_step('s', par ^ 1), self.pv_step('s', par, 0, 16)]
            extra = list(extra) + [(38, ['s_sub_u32 s%d, s%d, 4' % (sD, sD)])]
            if next_masked:
                for i, g in enumerate(self.mask_scalars(range(-3, 2))): extra.append((40 + 2 * i, g))
            return self.at_block(name, steps, wa[32:] + wb[:32], nxt, int(self.opt.get('sbar', 56)), dma, extra=extra, **kw)
        sp0 = single('L_sp', 0, False, self.at_dma(), knext_s)
        sp1 = single('L_sp1', 1, False, self.at_dma(), knext_s, extra=[(44, ['s_sub_u32 s%d, s%d, 1' % (sCnt, sCnt)])])
        sp1('s_cmp_lg_u32 s%d, 0\ns_cbranch_scc1 L_sp' % sCnt)
        s1b = single('L_s1', 0, False, self.at_dma(), knext_s, True, wait='WAIT kv:1 ca:0 lgkm0', post_bar=self.publish(F_CA, False))
        s2b = single('L_s2', 1, True, self.at_dma(False, True), knext_s, True)
        vnext_s = [self.v_read(n, n & 1, n >> 1) for n in range(6)]
        ld, chk = self.poll(vPoll, vT, 4)
        pl = self.groups(self.pctx_loads(0))
        ex = [(1, ld), (26, chk)] + [(28 + 4 * i, pl.pop(0)) for i in range(10)]
        s3b = single('L_s3', 0, True, [], vnext_s, wait='WAIT kv:0 lgkm0', extra=ex)
        fin = self.blk('atfin')
        for t in self.stamp('fin'): fin(t)
        wl = self.softmax('s', 1)
        self.check(wl, 's', 1, None)
        on = self.ones_step('s', 0)[0]
        for g in range(32, 68):
            if g % 8 == 0 and on: fin(on.pop(0))
            for t in wl[g]: fin(t)
            if g % 4 == 1: fin('s_nop 0')
            if g % 8 == 3 and g < 60:
                for t in pl.pop(0): fin(t)
        for t in self.stamp('fb1'): fin(t)
        self.ffn_b(fin)
        for t in self.stamp(5): fin(t)
        self.pl_rest = pl
        head = [p0, p1]; tail = [s3b, fin]
        return [head + [dp, dp, dp, dpx, dd, dd, trn, fa, sp0, sp1, sp0, sp1, s1b, s2b] + tail,
                head + [dp, dpx, dd, dd, trn, fa, sp0, sp1, s1b, s2b] + tail,
                head + [dpx, dd, trn, fa, sp0, sp1, sp0, sp1, s1b, s2b] + tail,
                head + [dp, dp, dpx, dd, dd, trn, fa, pub7] + tail]

    @staticmethod
    def groups(seq):
        out = [[]]
        for t in seq:
            out[-1].append(t)
            if t.startswith('buffer'): out.append([])
        if not out[-1]: out.pop()
        return out

    def o_scalars(self):
        out = []
        A, B = 's%d' % sA, 's%d' % sB
        for n in range(4):
            out += ['s_add_u32 %s, s%d, %d' % (A, sY, n), 's_and_b32 %s, %s, 3' % (A, A), 's_lshl_b32 %s, s%d, 2' % (B, sX), 's_add_u32 %s, %s, %s' % (A, A, B)]
            if n:
                out += ['s_lshl_b32 %s, %s, 4' % (B, A), 's_add_u32 %s, %s, s%d' % (B, B, sJ), 's_lshl_b32 %s, %s, 15' % (B, B),
                        's_add_u32 %s, %s, s%d' % (B, B, sMC), 's_add_u32 s%d, %s, %d' % (sPc[n - 1], B, CTXB)]
            out += ['s_lshl_b32 %s, %s, 2' % (A, A), 's_add_u32 %s, %s, s%d' % (A, A, sW), 's_mul_i32 %s, %s, %d' % (A, A, 32 * 1152),
                    's_mul_i32 %s, s%d, 288' % (B, sY), 's_add_u32 s%d, %s, %s' % (sWoS[n], A, B)]
        out += ['s_mul_i32 s%d, s%d, 9216' % (sT2, sW),
                's_cmp_eq_u32 s%d, 3\ns_cselect_b32 s%d, %d, s%d' % (sW, sT3, OOB, sWoS[1]),
                's_cmp_eq_u32 s%d, 3\ns_cselect_b32 s%d, %d, s%d' % (sW, sWoM1, 3 * 9216 + 1024, sT2)]
        return out
    def wo7_setup(self):
        out = ['s_sub_u32 s94, 3, s%d' % sW, 's_mul_i32 s94, s94, %d' % (32 * 1152), 's_add_u32 s%d, s%d, s94' % (sWo7, sWoS[1]),
               's_lshl_b32 s94, s%d, 6' % sW, 'v_lshrrev_b32 v%d, 4, v%d' % (vU, vL16), 'v_add_u32 v%d, s94, v%d' % (vU, vU)]
        for i in range(2):
            if i: out.append('v_add_u32 v%d, 0x100, v%d' % (vU, vU))
            out += ['v_mul_u32_u24 v%d, 0xe39, v%d' % (vU + 1, vU), 'v_lshrrev_b32 v%d, 16, v%d' % (vU + 1, vU + 1),
                    'v_mul_u32_u24 v%d, 0x360, v%d' % (vU + 1, vU + 1), 'v_lshl_add_u32 v%d, v%d, 4, v%d' % (vWo7[i], vU, vU + 1)]
        return out
    def wo_dma(self, n, tag):
        if n == 4:
            ld = 'buffer_load_dwordx4 v%d, %s, s%d offen lds @%s'
            return [['s_lshr_b32 m0, s%d, 2' % sMW], [ld % (vWo7[0], srd(R_WO), sWo7, tag), 's_add_u32 m0, m0, 4096'],
                    [ld % (vWo7[1], srd(R_WO), sWo7, tag), 's_mov_b32 m0, 8192'], [ld % (vWo[8], srd(R_WO), sWo7, tag)]]
        loc = [WK0, WK0 + 4 * 9216, 9216, 5 * 9216, 0][n]
        so_ = [sWoS[0], sT3, sWoS[2], sWoS[3], sWoS[1]][n]
        out = []
        for i in range(9):
            if i % 4 == 0:
                out.append(['s_add_u32 m0, s%d, %d' % (sWoM1 if n == 1 else sT2, loc + (i >> 2) * 4096)] if n < 4 else ['s_mov_b32 m0, %d' % ((i >> 2) * 4096)])
            out.append(['buffer_load_dwordx4 v%d, %s, s%d offen offset:%d lds @%s' % (vWo[i], srd(R_WO), so_, (i & 3) * 1024, tag)])
        return self.merge_m0(out)
    def pctx_loads(self, blk):
        out = []
        for n in range(1, 4):
            if blk:
                out += ['s_lshl_b32 s94, s%d, 1' % sJ, 's_sub_u32 s94, 15, s94', 's_lshl_b32 s94, s94, 15', 's_add_u32 s%d, s%d, s94' % (sPc[n - 1], sPc[n - 1])]
            out.append('s_add_u32 s%d, s%d, 4096' % (sPc4, sPc[n - 1]))
            for ks in range(4):
                for qt in range(2):
                    out.append('buffer_load_dwordx4 %s, v%d, %s, s%d offen offset:%d %s' % (rr(pctx(blk, n, qt, ks)), vL16, srd(R_WS), sPc4 if qt else sPc[n - 1], ks * 1024, self.opt.get('pcf', 'sc1').replace('-', '')))
        return out
    def wo_reads(self, f, c, u):
        base, off = (vRO[0], 9216 * c) if c < 7 else ((vRO[1], 9216 * (c - 7)) if c < 14 else (vRO[2], 9216 * (c - 14)))
        r = fifo(f)
        return ['ds_read_b64_tr_b16 %s, v%d offset:%d' % (rr((r[0], r[1] + 2 * hf), 2), base, off + hf * 4608 + 32 * u) for hf in range(2)]
    def part_store(self, acc, u, tag, sPart=sPart):
        x, y = acc(u, 0)[1], acc(u, 1)[1]
        cv = ['v_cvt_pk_bf16_f32 v%d, v%d, v%d' % (x, x, x + 1), 'v_cvt_pk_bf16_f32 v%d, v%d, v%d' % (x + 1, x + 2, x + 3),
              'v_cvt_pk_bf16_f32 v%d, v%d, v%d' % (x + 2, y, y + 1), 'v_cvt_pk_bf16_f32 v%d, v%d, v%d' % (x + 3, y + 2, y + 3)]
        st = ['buffer_store_dwordx4 %s, v%d, %s, s%d offen sc1 @%s' % (v4(x), vL16, srd(R_WS), sPart, tag), 's_add_u32 s%d, s%d, 8192' % (sPart, sPart)]
        return cv, st
    def part_base(self, blk, dst, wave, extra):
        out = ['s_mov_b32 s94, s%d' % sJ] if blk == 0 else ['s_sub_u32 s94, 15, s%d' % sJ]
        out += ['s_lshl_b32 s94, s94, 2', 's_add_u32 s94, s94, s%d' % sY, 's_lshl_b32 s94, s94, 2', 's_add_u32 s94, s94, s%d' % wave,
                's_mul_i32 s94, s94, %d' % (72 * 1024), 's_add_u32 s94, s94, %d' % PART, 's_add_u32 s%d, s94, s%d' % (dst, extra)]
        return out

    def o_phase(self):
        b = self.blk('oproj')
        LA = 10; P0 = 36
        pv, vfr, _ = self.pv_step('s', 1, 0, 0)
        pv = self.ones_step('s', 1)[0] + pv
        KM = int(self.opt.get('km', 8))
        seq = [(0, c, u) for c in range(16) for u in range(9)] + [(1, c, u) for c in range(KM) for u in range(9)]
        seq += [(1, c, u) for u in range(9) for c in range(KM, 16)]
        ms = list(pv)
        for f, (blk, c, u) in enumerate(seq):
            for qt in range(2):
                d = lacc(u, qt) if blk == 0 else hacc(u, qt)
                ms.append(mfma(d, fifo(f), pctx(blk, c >> 2, qt, c & 3), '0' if c == 0 else d))
        G = len(ms)
        st = Stream(G)
        for n in range(6, 16): st.front[2 * (n - 6)].append(vfr[n][0])
        for f, (blk, c, u) in enumerate(seq):
            for hf, t in enumerate(self.wo_reads(f, c, u)): st.front[P0 + 2 * f - LA + hf].append(t)
        B1 = P0 - LA - 1; B2 = P0 + 2 * 63 - LA - 1; B2b = P0 + 2 * 108 - LA - 1; B3 = int(self.opt.get('b3', 560))
        st.front[B1] += ['WAIT wo0:0 lgkm0', 's_barrier']
        st.vmem(self.pl_rest[:5], 1, 4)
        e1 = st.vmem(self.wo_dma(4, 'wo1') + self.wo_dma(2, 'wo1'), B1 + 1, 4)
        fz = self.finalize((2, 3), ['s_sub_u32 s94, 15, s%d' % sJ], 'cb', lead=8)
        e2 = st.vmem(self.pl_rest[5:] + self.wo_dma(3, 'wo2'), e1 + 4, int(self.opt.get('wsp', 7)))
        assert e2 < B2b - 30, e2
        cap = int(self.opt.get('fcap', 4))
        e = st.valu(fz, 0, cap=lambda g: 12 if g % cap == 0 else 8, vm_from=e1 + 2, vm_sp=int(self.opt.get('cbsp', 12)))
        assert e < B2b - 20, e
        st.front[B2] += ['WAIT wo1:0', 's_barrier']
        st.front[B2b] += ['WAIT wo2:0 cb:0', 's_barrier']
        st.gaps[B2b + 1] += self.publish(F_CB, False); st.gaps[B2b + 5] += self.publish(F_FF, False)
        st.gaps[B2b + 8] += ['v_add_u32 v%d, 0x4000, v%d' % (vPoll, vPoll)]
        ld, chk = self.poll(vPoll, vT, 4)
        st.vmem([ld], B2b + 30, 4)
        st.gaps[B2b + 55] += chk
        e = st.vmem(self.groups(self.pctx_loads(1)), B2b + 57, int(self.opt.get('psp', 6)))
        assert e < 450, e
        pb = ['s_lshl_b32 s95, s%d, 10' % sX] + self.part_base(0, sPart, sW, 95)
        st.front[B2b + 20] = pb + st.front[B2b + 20]
        for u in range(9):
            cv, so_ = self.part_store(lacc, u, 'pl')
            e = st.valu([(0, t) for t in cv], P0 + 270 + 2 * u + 1 + 4)
            st.vmem([so_], max(e + 1, int(self.opt.get('pl0', 345)) + 14 * u), 2)
        pb = ['s_lshl_b32 s95, s%d, 10' % sX] + self.part_base(1, sPart2, sW, 95)
        st.front[400] = pb + st.front[400]
        spill = []
        for u in range(9):
            cv, so_ = self.part_store(hacc, u, 'ph', sPart2)
            n = 2 * (16 - KM)
            g = P0 + 288 + 18 * KM + n * u + n - 1 + 5
            if g + 6 < G:
                e = st.valu([(0, t) for t in cv], g); st.vmem([so_], e + 1, 2)
            else: spill = cv + so_
        st.front[B3] += ['WAIT pl:0', 's_barrier']
        st.gaps[B3 + 1] += self.publish(F_PL, False)
        g = 430
        for grp in self.final_prefetch():
            if grp[-1].startswith('buffer'): g = st.vmem([grp], g, 3)
            else: st.gaps[g] += grp; g += 2
        assert g < 550, g
        fa = self.flag_addr(vPoll, F_PL, ['s_and_b32 s94, s2, 0xf8'], 8, 1)
        st.gaps[G - 50] += fa[:5]; st.gaps[G - 48] += fa[5:]
        ld, chk = self.poll(vPoll, vT, 8)
        st.vmem([ld], G - 12, 2)
        fl = self.final_loads(0)
        for g in range(G): st.gaps[g] += self.stamp('o%d' % g)
        b.autowait()
        if 'otwice' in self.opt:
            b('s_mov_b32 s%d, 2\nL_otw:' % sCnt)
            for t in self.stamp('ob'): b(t)
        x = self.opt.get('ox', '')
        for g in range(G):
            for lst in (st.front, st.gaps):
                lst[g] = [t for t in lst[g] if not (('d' in x and t.startswith('buffer_load_dwordx4')) or ('s' in x and t.startswith('buffer_store_dwordx4'))
                                                   or ('r' in x and t.startswith('ds_read')) or ('w' in x and t.startswith('WAIT')))]
        emit_gaps(b, ms, [st.front[g] + st.gaps[g] for g in range(G)])
        if 'otwice' in self.opt:
            b('s_waitcnt vmcnt(0) lgkmcnt(0)\nv_subrev_u32 v%d, 0x8000, v%d\ns_sub_u32 s%d, s%d, 1\ns_cmp_lg_u32 s%d, 0\ns_cbranch_scc1 L_otw\nv_add_u32 v%d, 0x8000, v%d' % (vPoll, vPoll, sCnt, sCnt, sCnt, vPoll, vPoll))
        b('s_nop 6')
        for t in spill: b(t)
        for t in self.stamp(7): b(t)
        b('s_waitcnt vmcnt(0)\ns_barrier')
        for t in self.publish(F_PH, False): b(t)
        for t in chk + fl[0] + fl[1]: b(t)
        b('v_add_u32 v%d, 0x4000, v%d' % (vPoll, vPoll))
        b('s_waitcnt vmcnt(0)')
        self.final_combine(b, 0)
        for t in self.stamp(8): b(t)
        ld, chk = self.poll(vPoll, vT, 8)
        for t in ld: b(t)
        b('s_waitcnt vmcnt(0)')
        for t in chk: b(t)
        for t in self.stamp(9): b(t)
        fl = self.final_loads(1)
        for t in fl[0] + fl[1]: b(t)
        b('s_waitcnt vmcnt(0)')
        self.final_combine(b, 1)
        return b

    def item_scalars(self, blk, rnd):
        out = ['s_and_b32 s95, s%d, 1' % sX, 's_mul_i32 s94, s95, %d' % (5 if blk == 0 else 4)]
        if rnd == 0: out += ['s_add_u32 s94, s94, s%d' % sW]
        else: out += ['s_add_u32 s94, s94, 4']
        return out
    def item_exists(self, blk):
        return ['s_and_b32 s95, s%d, 1' % sX, 's_xor_b32 s95, s95, %d' % blk, 's_or_b32 s95, s95, s%d' % sW, 's_cmp_eq_u32 s95, 0']
    vOA = [4, 5, 6, 7]
    vRw = [8, 9]
    def final_prefetch(self):
        out = []
        for blk in range(2):
            g = (['s_mov_b32 s94, s%d' % sJ] if blk == 0 else ['s_sub_u32 s94, 15, s%d' % sJ])
            g += ['s_lshl_b32 s94, s94, 2', 's_lshr_b32 s95, s%d, 1' % sX, 's_add_u32 s94, s94, s95', 's_lshl_b32 s94, s94, 5']
            out.append(g + ['v_bfe_u32 v%d, v%d, 4, 4' % (vU, vL16), 'v_add_u32 v%d, s94, v%d' % (self.vRw[blk], vU)])
            out.append(['v_lshlrev_b32 v%d, 2, v%d' % (vU, self.vRw[blk]), 'v_add_u32 v%d, %d, v%d' % (vU, GBUF, vU)])
            out.append(['buffer_load_dword v%d, v%d, %s, 0 offen sc1' % (2 * blk, vU, srd(R_WS))])
            out.append(['buffer_load_dword v%d, v%d, %s, 0 offen offset:64 sc1' % (2 * blk + 1, vU, srd(R_WS))])
            out.append(['v_mul_u32_u24 v%d, 0x480, v%d' % (vU, self.vRw[blk]), 'v_lshrrev_b32 v%d, 8, v%d' % (vU + 1, vL16)])
            out.append(['s_mul_i32 s%d, s%d, 288' % (sT0, sY), 'v_lshl_add_u32 v%d, v%d, 3, v%d' % (vU, vU + 1, vU), 'v_add_u32 v%d, s%d, v%d' % (vU, sT0, vU)])
            for rnd in range(2):
                it = 2 * blk + rnd
                g = self.item_scalars(blk, rnd) + ['s_lshl_b32 s94, s94, 5']
                if rnd: g += self.item_exists(blk) + ['s_cselect_b32 s94, s94, 0x40000000']
                out.append(g + ['v_add_u32 v%d, s94, v%d' % (self.vOA[it], vU)])
                out.append(['s_movk_i32 s%d, 0x4800' % sT1, 'buffer_load_dwordx2 v[%d:%d], v%d, %s, 0 offen' % (vX + 4 * it, vX + 4 * it + 1, self.vOA[it], srd(R_X))])
                out.append(['buffer_load_dwordx2 v[%d:%d], v%d, %s, s%d offen' % (vX + 4 * it + 2, vX + 4 * it + 3, self.vOA[it], srd(R_X), sT1)])
        return out
    @staticmethod
    def pq(rnd, p): return lacc(4 * rnd + (p >> 1), p & 1)[1]
    def final_loads(self, blk):
        skip = self.lab('skip')
        out = [['s_lshr_b32 s%d, s%d, 1' % (sT0, sX)], []]
        for rnd in range(2):
            o = out[rnd]
            if rnd: o += self.item_exists(blk) + ['s_cbranch_scc0 ' + skip]
            o += self.item_scalars(blk, rnd) + ['s_lshl_b32 s%d, s94, 13' % sT1] + self.part_base(blk, sT1, sT0, sT1)
            o.append('s_add_u32 s%d, s%d, 4096' % (sT2, sT1))
            for p in range(8):
                o.append('buffer_load_dwordx4 %s, v%d, %s, s%d offen offset:%d sc1' % (v4(self.pq(rnd, p)), vL16, srd(R_WS), sT1 + (p >> 2), (p & 3) * 1024))
        out[1].append(skip + ':')
        return out
    def final_combine(self, b, blk):
        skip = self.lab('skip')
        A, X, C0, T, O = vU, vU + 8, 208, 210, 10
        b('v_mov_b32 v%d, 0x3f80\nv_mov_b32 v%d, 0x3f800000' % (C0, C0 + 1))
        for rnd in range(2):
            it = 2 * blk + rnd
            if rnd:
                for t in self.item_exists(blk): b(t)
                b('s_cbranch_scc0 ' + skip)
            for d in range(4):
                b('v_lshlrev_b32 v%d, 16, v%d\nv_and_b32 v%d, 0xffff0000, v%d' % (A + 2 * d, self.pq(rnd, 0) + d, A + 2 * d + 1, self.pq(rnd, 0) + d))
            for p in range(1, 8):
                for d in range(4):
                    for h in range(2):
                        b('v_dot2_f32_bf16 v%d, v%d, v%d, v%d' % (A + 2 * d + h, self.pq(rnd, p) + d, C0 + h, A + 2 * d + h))
            for d in range(4):
                b('v_lshlrev_b32 v%d, 16, v%d\nv_and_b32 v%d, 0xffff0000, v%d' % (X + 2 * d, vX + 4 * it + d, X + 2 * d + 1, vX + 4 * it + d))
            self.ffn_add(b, blk, it, X)
            for qt in range(2):
                b('v_sub_f32 v%d, 1.0, v%d' % (T, 2 * blk + qt))
                for e in range(4):
                    r = 4 * qt + e
                    b('v_mul_f32 v%d, v%d, v%d\nv_fmac_f32 v%d, v%d, v%d' % (X + r, T, X + r, X + r, 2 * blk + qt, A + r))
            for d in range(4):
                b('v_cvt_pk_bf16_f32 v%d, v%d, v%d' % (O + d, X + 2 * d, X + 2 * d + 1))
            b('s_movk_i32 s%d, 0x4800' % sT1)
            b('buffer_store_dwordx2 v[%d:%d], v%d, %s, 0 offen' % (O, O + 1, self.vOA[it], srd(R_OUT)))
            b('buffer_store_dwordx2 v[%d:%d], v%d, %s, s%d offen' % (O + 2, O + 3, self.vOA[it], srd(R_OUT), sT1))
        b(skip + ':')
    def ffn_add(self, b, blk, it, X):
        lab = self.lab('ffa'); back = self.lab('back')
        b('v_readfirstlane_b32 s94, v%d\ns_sub_u32 s94, s%d, s94\ns_cmp_lt_u32 s94, 32\ns_cbranch_scc1 %s\n%s:' % (self.vRw[blk], sTok, lab, back))
        t = self.blk(lab, tail=True)
        t(lab + ':')
        t('v_lshlrev_b32 v16, 2, v%d\nv_add_u32 v16, %d, v16\ns_mov_b32 s%d, 0x4000' % (vL16, FLAG + F_FF * 16384 + 112 * 64, sSpin))
        t('%s_l:' % lab)
        t('s_movk_i32 s94, 0x1000\ns_movk_i32 s95, 0x2000')
        t('buffer_load_dword v17, v16, %s, 0 offen sc1\nbuffer_load_dword v18, v16, %s, s94 offen sc1\nbuffer_load_dword v20, v16, %s, s95 offen sc1' % (srd(R_WS), srd(R_WS), srd(R_WS)))
        t('s_waitcnt vmcnt(0)\nv_and_b32 v17, v17, v18\nv_cmp_ne_u32 vcc, 1, v17\ns_mov_b64 s[%d:%d], vcc\nv_cmp_ne_u32 vcc, 1, v20' % (sRet, sRet + 1))
        t('s_and_b32 s94, vcc_lo, 0xffff\ns_or_b32 s94, s94, s%d\ns_or_b32 s94, s94, s%d\ns_cbranch_scc0 %s_ok' % (sRet, sRet + 1, lab))
        t('s_sleep 4\ns_sub_u32 s%d, s%d, 1\ns_cmp_lg_u32 s%d, 0\ns_cbranch_scc1 %s_l' % (sSpin, sSpin, sSpin, lab))
        t('%s_ok:' % lab)
        t('v_mul_u32_u24 v16, 0x480, v%d\nv_sub_u32 v16, v%d, v16\nv_lshlrev_b32 v16, 1, v16\nv_add_u32 v16, %d, v16' % (self.vRw[blk], self.vOA[it], YACC))
        Y = [qfrag(2 + (rep >> 2), rep & 3)[1] for rep in range(8)]
        for rep in range(8):
            t('s_mov_b32 s94, %d\nbuffer_load_dwordx4 %s, v16, %s, s94 offen sc1' % (4096 * rep, v4(Y[rep]), srd(R_WS)))
        t('s_waitcnt vmcnt(0)')
        for rep in range(1, 8):
            for e in range(4): t('v_add_f32 v%d, v%d, v%d' % (Y[0] + e, Y[0] + e, Y[rep] + e))
        for qt in range(2):
            t('v_add_u32 v17, %d, v%d\nv_cmp_eq_u32 vcc, s%d, v17\nv_mov_b32 v18, s%d\ns_nop 0\nv_cndmask_b32 v18, 0, v18, vcc' % (16 * qt, self.vRw[blk], sTok, sRsel))
            for e in range(4): t('v_fmac_f32 v%d, v18, v%d' % (X + 4 * qt + e, Y[0] + e))
        t('s_branch ' + back)

    def finish(self):
        b = self.blk('finish')
        if self.stamps:
            b('s_waitcnt vmcnt(0)')
            for t in self.stamp('end'): b(t)
            b('s_lshl_b32 s94, s2, 8\ns_lshl_b32 s95, s%d, 6\ns_add_u32 s94, s94, s95\ns_add_u32 s94, s94, %d' % (sW, TIMB))
            b('v_mov_b32 v0, s94')
            for n, r in enumerate(self.STAMP):
                b('v_mov_b32 v1, s%d\nbuffer_store_dword v1, v0, %s, 0 offen offset:%d' % (r, srd(R_WS), 4 * n))
        b('s_waitcnt vmcnt(0) lgkmcnt(0)')
        b('L_end:\ns_endpgm')
        return b

    def build(self):
        self.ffwg = 1000 if 'noffn' in self.opt else 112
        setup = self.setup(); start = self.start()
        kv0 = self.kv_phase(0); kv1 = self.kv_phase(1)
        q = self.q_phase()
        att = self.attention()
        op = self.o_phase()
        fin = self.finish()
        traces = [[setup, start, kv, q] + a + [op, fin] for kv in (kv0, kv1) for a in att]
        derive_waits(traces)
        allb = self.blocks + self.tail
        finalize_waits(allb)
        errs = []
        for tr in traces: errs += check_hazards(tr)
        for b in self.tail: errs += check_hazards([b])
        for e in sorted(set(errs)): print(e, file=sys.stderr)
        if errs: raise SystemExit('hazards found')
        hdr = open('cdna_kernels/%s.s.ref' % NAME).read().split('; Override')[0]
        out = hdr + ('; stamps=%s\n; wsoff=%s\n' % (','.join(self.stamps), self.opt.get('wsoff', 0)) if self.stamps else '') + '; @launch grid=(256,1,1) block=(256,1,1) lds=%d\n' % LDS_BYTES
        out += '.amdgcn_target "amdgcn-amd-amdhsa--gfx950"\n.text\n.globl %s_kernel\n.p2align 8\n.type %s_kernel,@function\n%s_kernel:\n' % (NAME, NAME, NAME)
        out += render(allb)
        out += '.section .rodata,"a"\n.p2align 6\n.amdhsa_kernel %s_kernel\n' % NAME
        out += '  .amdhsa_next_free_vgpr 512\n  .amdhsa_next_free_sgpr 102\n  .amdhsa_accum_offset 256\n  .amdhsa_group_segment_fixed_size 0\n'
        out += '  .amdhsa_kernarg_size 120\n  .amdhsa_user_sgpr_count 2\n  .amdhsa_user_sgpr_kernarg_segment_ptr 1\n  .amdhsa_system_sgpr_workgroup_id_x 1\n.end_amdhsa_kernel\n'
        return out

if __name__ == '__main__':
    opts = dict(a.split('=') for a in sys.argv[2:])
    st = opts.pop('stamps', None)
    g = Gen(stamps=st.split(',') if st else None)
    g.opt = opts
    open(sys.argv[1], 'w').write(g.build())
```

```python
import re

REG_RE = re.compile(r'\b([vas])(\d+)\b|\b([vas])\[(\d+):(\d+)\]|\b(vcc|exec|m0|scc)\b')

def regs_of(text):
    out = []
    for m in REG_RE.finditer(text):
        if m.group(1):
            out.append((m.group(1), int(m.group(2))))
        elif m.group(3):
            out += [(m.group(3), i) for i in range(int(m.group(4)), int(m.group(5)) + 1)]
        else:
            out.append((m.group(6), 0))
    return out

TRANS = ('v_exp_f32', 'v_log_f32', 'v_rcp_f32', 'v_rsq_f32', 'v_sqrt_f32')

class I:
    __slots__ = ('text', 'op', 'kind', 'rd', 'wr', 'srcc', 'ab', 'wait', 'tag', 'lds_dma', 'store_data')
    def __init__(self, text, tag=None):
        self.text = text
        self.tag = tag
        self.wait = None
        t = text.split(';')[0].strip()
        self.op = t.split()[0] if t else ''
        op = self.op
        self.rd, self.wr, self.srcc, self.ab = [], [], [], []
        self.lds_dma = False
        self.store_data = []
        if not t or t.endswith(':') or op.startswith('.'):
            self.kind = 'label'
            return
        rest = t[len(op):]
        ops = [o.strip() for o in rest.split(',')]
        if op.startswith('v_mfma'):
            self.kind = 'mfma'
            self.wr = regs_of(ops[0]); self.ab = regs_of(ops[1]) + regs_of(ops[2]); self.srcc = regs_of(ops[3])
            self.rd = self.ab + self.srcc
        elif op.startswith('ds_read') or op.startswith('ds_bpermute') or op.startswith('ds_swizzle'):
            self.kind = 'ds'; self.wr = regs_of(ops[0]); self.rd = regs_of(','.join(ops[1:]))
        elif op.startswith('ds_write') or op.startswith('ds_add'):
            self.kind = 'ds'; self.rd = regs_of(rest)
        elif op.startswith('buffer_load'):
            self.kind = 'vmem'
            if re.search(r'\blds\b', rest):
                self.lds_dma = True; self.rd = regs_of(rest) + [('m0', 0)]
            else:
                self.wr = regs_of(ops[0]); self.rd = regs_of(','.join(ops[1:]))
        elif op.startswith('buffer_store') or op.startswith('buffer_atomic'):
            self.kind = 'vmem'; self.rd = regs_of(rest)
            if op.endswith('x4') or op.endswith('x3'):
                self.store_data = regs_of(ops[0])
            if op.startswith('buffer_atomic') and re.search(r'\bsc0\b', rest):
                self.wr = regs_of(ops[0])
        elif op in ('buffer_inv', 'buffer_wbl2'):
            self.kind = 'vmem'
        elif op.startswith('s_load') or op.startswith('s_memtime') or op.startswith('s_memrealtime'):
            self.kind = 'smem'; self.wr = regs_of(ops[0]); self.rd = regs_of(','.join(ops[1:]))
        elif op == 's_waitcnt':
            self.kind = 'wait'
        elif op == 's_nop':
            self.kind = 'nop'
        elif op == 's_barrier':
            self.kind = 'barrier'
        elif op.startswith('s_cbranch') or op in ('s_branch', 's_setpc_b64', 's_endpgm', 's_call_b64', 's_swappc_b64'):
            self.kind = 'branch'
            self.rd = regs_of(rest) + ([('vcc', 0)] if 'vcc' in op else []) + ([('scc', 0)] if 'scc' in op else [])
        elif op.startswith('s_cmp') or op.startswith('s_bitcmp'):
            self.kind = 'salu'; self.rd = regs_of(rest); self.wr = [('scc', 0)]
        elif op in ('s_sleep', 's_setprio'):
            self.kind = 'salu'
        elif op.startswith('s_'):
            self.kind = 'salu'; self.wr = regs_of(ops[0]); self.rd = regs_of(','.join(ops[1:]))
            if 'saveexec' in op: self.wr.append(('exec', 0))
        elif op.startswith('v_'):
            self.kind = 'valu'
            if op.startswith('v_permlane') and 'swap' in op:
                self.wr = regs_of(rest); self.rd = regs_of(rest)
            elif op.startswith('v_cmp'):
                self.wr = regs_of(ops[0]); self.rd = regs_of(','.join(ops[1:]))
            else:
                self.wr = regs_of(ops[0]); self.rd = regs_of(','.join(ops[1:]))
                if op.startswith('v_fmac') or op.startswith('v_dot2c') or '_dpp' in op or ' row_' in rest or 'quad_perm' in rest:
                    self.rd += self.wr
        else:
            raise ValueError('unknown instruction: ' + text)
    def states(self):
        if self.kind == 'label': return 0
        if self.kind == 'nop': return int(self.text.split()[1]) + 1
        return 1
    def is_trans(self): return self.op.replace('_e32', '').replace('_e64', '') in TRANS
    def is_dpp(self): return '_dpp' in self.op or ' row_' in self.text or 'quad_perm' in self.text

class Block:
    def __init__(self, name):
        self.name = name; self.ins = []
    def __call__(self, text, tag=None):
        for ln in text.split('\n'):
            ln = ln.strip()
            if not ln: continue
            if ln.startswith('WAIT'):
                i = self.autowait()
                i.tag = [(x.split(':')[0], int(x.split(':')[1])) for x in ln.split()[1:] if ':' in x]
                if 'lgkm0' in ln.split(): i.wait['lgkm'] = 0
                continue
            t = tag
            if '@' in ln:
                ln, t = ln.split('@'); ln = ln.strip(); t = t.strip()
            self.ins.append(I(ln, t))
    def add(self, i): self.ins.append(i)
    def autowait(self):
        i = I('s_waitcnt auto'); i.wait = {'vm': None, 'lgkm': None}; self.ins.append(i); return i

def emit_gaps(blk, mfmas, gaps, pre=None):
    if pre is not None:
        for t in pre: blk(t)
    order = {'wait': 0, 'salu': 1, 'barrier': 1, 'ds': 2, 'vmem': 2, 'valu': 3, 'nop': 3, 'branch': 4, 'label': 4}
    for i, m in enumerate(mfmas):
        blk(m)
        blk.autowait()
        for t in gaps[i]: blk(t)

def derive_waits(traces):
    for tr in traces:
        seq = [i for b in tr for i in b.ins]
        pend = {'vm': [], 'lgkm': []}
        n = len(seq)
        def cnt_of(i):
            if i.kind == 'vmem' and i.op != 'buffer_inv_x': return 'vm'
            if i.kind in ('ds', 'smem'): return 'lgkm'
            return None
        gen = 0
        for k, i in enumerate(seq):
            if i.kind == 'barrier': gen += 1
            if i.kind == 'wait' and i.wait is not None:
                need = {'vm': None, 'lgkm': None}
                for (tg, age) in (i.tag or []):
                    for idx in range(len(pend['vm']) - 1, -1, -1):
                        p = pend['vm'][idx]
                        if p[2] == tg and p[3] <= gen - age:
                            left = len(pend['vm']) - 1 - idx
                            need['vm'] = left if need['vm'] is None else min(need['vm'], left)
                            break
                for j in range(k + 1, n):
                    x = seq[j]
                    if x.kind == 'wait' and x.wait is not None: break
                    touched = set(x.rd) | set(x.wr)
                    for c in pend:
                        for idx in range(len(pend[c]) - 1, -1, -1):
                            if pend[c][idx][0] & touched:
                                left = len(pend[c]) - 1 - idx
                                if c == 'lgkm' and any(p[1] == 'smem' for p in pend[c]): left = 0
                                need[c] = left if need[c] is None else min(need[c], left)
                                break
                for c in need:
                    if need[c] is not None:
                        lim = 63 if c == 'vm' else 15
                        v = min(need[c], lim)
                        i.wait[c] = v if i.wait[c] is None else min(i.wait[c], v)
                    v = i.wait[c]
                    if v is not None and len(pend[c]) > v:
                        pend[c] = pend[c][len(pend[c]) - v:] if v else []
                continue
            if i.kind == 'wait':
                for c, pat in (('vm', r'vmcnt\((\d+)\)'), ('lgkm', r'lgkmcnt\((\d+)\)')):
                    m = re.search(pat, i.text)
                    if m:
                        v = int(m.group(1))
                        if len(pend[c]) > v: pend[c] = pend[c][len(pend[c]) - v:] if v else []
                continue
            touched = set(i.rd) | set(i.wr)
            for c in pend:
                for p in pend[c]:
                    if p[0] & touched:
                        raise RuntimeError('unwaited %s result used by: %s (regs %s) in trace %s' % (c, i.text, sorted(p[0] & touched)[:4], [b.name for b in tr]))
            c = cnt_of(i)
            if c: pend[c].append((set() if i.tag == 'pf' else set(i.wr), i.kind, i.tag, gen))

def finalize_waits(blocks):
    for b in blocks:
        out = []
        for i in b.ins:
            if i.kind == 'wait' and i.wait is not None:
                parts = []
                if i.wait['vm'] is not None: parts.append('vmcnt(%d)' % i.wait['vm'])
                if i.wait['lgkm'] is not None: parts.append('lgkmcnt(%d)' % i.wait['lgkm'])
                if not parts: continue
                j = I('s_waitcnt ' + ' '.join(parts))
                out.append(j)
            else:
                out.append(i)
        b.ins = out

def check_hazards(trace, passes=4):
    seq = [i for b in trace for i in b.ins if i.kind != 'label']
    errs = []
    RAW = {4: 8, 8: 12}[passes]; OVL = {4: 6, 8: 10}[passes]; WARC = {4: 3, 8: 7}[passes]
    for k, p in enumerate(seq):
        dist = 0
        pw = set(p.wr)
        pv = {r for r in pw if r[0] in 'va'}
        ps = {r for r in pw if r[0] in ('s', 'vcc')}
        for j in range(k + 1, min(k + 24, len(seq))):
            c = seq[j]
            need = 0
            cr, cw = set(c.rd), set(c.wr)
            if p.kind == 'mfma':
                if c.kind == 'mfma':
                    if pw & set(c.ab): need = max(need, RAW)
                    if pw & set(c.srcc) and c.srcc != p.wr: need = max(need, OVL)
                    if pw & cw and not (pw & set(c.srcc)): need = max(need, RAW)
                elif c.kind in ('valu', 'ds', 'vmem'):
                    if pw & (cr | cw): need = max(need, RAW)
                if c.kind == 'valu' and set(p.srcc) & cw: need = max(need, WARC)
            elif p.kind == 'valu':
                if c.kind == 'mfma' and pv & cr: need = max(need, 2)
                if c.kind == 'valu':
                    if p.is_trans() and not c.is_trans() and pv & cr: need = max(need, 1)
                    if c.op.startswith('v_permlane') and pv & cr: need = max(need, 2)
                    if c.is_dpp() and pv & cr: need = max(need, 2)
                    if c.op.startswith('v_readfirstlane') or c.op.startswith('v_readlane'):
                        if pv & cr: need = max(need, 1)
                        if ps & cr: need = max(need, 4)
                    if ps & cr: need = max(need, 2)
                    if ('exec', 0) in pw and c.is_dpp(): need = max(need, 5)
                if c.kind == 'vmem' and ps & cr: need = max(need, 5)
                if c.kind == 'mfma' and ('exec', 0) in pw: need = max(need, 4)
            elif p.kind == 'salu':
                if ('m0', 0) in pw and c.kind == 'vmem' and c.lds_dma: need = max(need, 1)
            elif p.kind == 'vmem' and p.store_data:
                if set(p.store_data) & cw: need = max(need, 2 if c.kind == 'valu' else 1)
            if dist < need:
                errs.append((p, c, need - dist))
            dist += c.states()
            if dist >= 20: break
    return errs

def check_m0(trace):
    cur = None
    for b in trace:
        for i in b.ins:
            m = re.search(r';m(\d+)', i.text)
            if ('m0', 0) in i.wr: cur = m.group(1) if m else '?'
            elif i.kind == 'vmem' and i.lds_dma:
                if not m or m.group(1) != cur: raise RuntimeError('m0 mismatch at %s (have %s) in %s' % (i.text, cur, b.name))

def render(blocks):
    out = []
    for b in blocks:
        for i in b.ins:
            t = i.text.split(';')[0].rstrip()
            out.append(t if i.kind == 'label' else ' ' + t)
    return '\n'.join(out) + '\n'


def fix_hazards(traces, blocks, verbose=False):
    total = 0
    for _ in range(200):
        need = {}
        for tr in traces:
            for (p, c, n) in check_hazards(tr):
                need[id(c)] = max(need.get(id(c), (0, None, None))[0], n), p, c
        if not need: return total
        for b in blocks:
            out = []; last = -99
            for i in b.ins:
                if id(i) in need and len(out) - last > 12:
                    last = len(out)
                    n, p, c = need[id(i)]
                    if verbose: print('nop %d in %s: [%s] -> [%s]' % (n, b.name, p.text, c.text))
                    out.append(I('s_nop %d' % (n - 1))); total += n
                out.append(i)
            b.ins = out
    raise RuntimeError('hazard fixing does not converge')

class Stream:
    def __init__(self, ms):
        self.ms = ms; self.n = n = len(ms)
        self.front = [[] for _ in range(n)]; self.gaps = [[] for _ in range(n)]; self.tail = [[] for _ in range(n)]
    @staticmethod
    def icost(x):
        if x.startswith('buffer') or x.startswith('v_exp') or x.startswith('v_rcp'): return 8
        if x.startswith('ds_') or x.startswith('v_'): return 4
        return 0
    def cost(self, g):
        c = 0; ns = 0
        for t in self.front[g] + self.gaps[g] + self.tail[g]:
            for x in t.split('\n'):
                c += self.icost(x)
                if x.startswith('s_') or x.startswith('WAIT'): ns += 1
        return c + 4 * max(0, ns - 1)
    def has(self, g, pre): return 0 <= g < self.n and any(t.startswith(pre) for t in self.front[g] + self.gaps[g])
    def vmem(self, groups, g, sp, near=2):
        for grp in groups:
            if not any(t.startswith('buffer') for t in grp):
                if grp[0].startswith('v_'): self.gaps[g] += grp
                else: self.front[g] += grp
                g += 1; continue
            while any(self.has(x, 'buffer') for x in range(g - near + 1, g + near)): g += 1
            if any(t.startswith('v_') for t in grp):
                k = max(i for i, t in enumerate(grp) if t.startswith('v_')) + 1
                self.gaps[g - 1] += grp[:k]; grp = grp[k:]
            self.front[g] += grp; g += sp
        return g - sp + 1
    def valu(self, seq, g=0, cap=8):
        seq = [list(x) for x in seq]
        for i in range(len(seq) - 2, -1, -1): seq[i][1] = min(seq[i][1], seq[i + 1][1])
        for (e, d, t) in seq:
            if e > g: g = e
            c = sum(self.icost(x) for x in t.split('\n'))
            if c:
                while self.cost(g) + c > max(cap, c) and g < min(d, self.n - 1): g += 1
            assert g <= d, (g, d, t)
            self.gaps[g].append(t)
        return g
    def salu(self, seq, g, hi=None):
        for t in seq:
            self.front[g].insert(0, t) if not any(x.startswith('s_') or x.startswith('WAIT') for x in self.front[g]) else self.gaps[g].append(t)
            g += 1
        return g
    def ds(self, reads, lo, hi):
        free = [x for x in range(lo, hi + 1) if not self.has(x, 'buffer') and not self.has(x, 'ds_')]
        if len(free) < len(reads): free = [x for x in range(lo, hi + 1) if not self.has(x, 'ds_')]
        assert len(free) >= len(reads), (lo, hi, len(reads))
        for i, t in enumerate(reads): self.front[free[i * len(free) // len(reads)]].append(t)
    def emit(self, blk, lo=0, hi=None):
        for g in range(lo, self.n if hi is None else hi):
            blk(self.ms[g]); blk.autowait()
            for t in self.front[g] + self.gaps[g] + self.tail[g]: blk(t)
```

```python
import sys
from asmlib import *

NAME = 'gated_mix__compressed_kv_cla__moe_arch_mod__prompt'

KBUF  = 0
VBUF  = 16 << 20
CTXB  = 32 << 20
PART  = 48 << 20
MISC  = 68 << 20
GBUF  = MISC
KEYB  = MISC + 8192
YACC  = MISC + 16384
FLAG  = MISC + 65536
TIMB  = MISC + (1 << 19)
WS_BYTES = 70 << 20
F_KV, F_KV2, F_CA, F_CB, F_PL, F_PH, F_FF = range(7)
OOB = 0x7ffffff0
FFWG = 112

XC, XA, XB = 0, 32768, 65536
WK0, WV0, WK1, WV1 = 98304, 114688, 131072, 147456
LDS_BYTES = 163840
XT = WV1
FS = LDS_BYTES - 1024

def srd(n): return 's[%d:%d]' % (n, n + 3)
R_WS, R_X, R_C, R_WK, R_WV, R_WQ, R_WO, R_OUT, R_DBG, R_WR, R_GW, R_WG, R_WU, R_WD = range(4, 60, 4)
R_PF = R_WR
sXcc, sLocal, sH = 0, 1, 3
sW, sX, sY, sJ = 60, 61, 62, 63
sCo = [None] + list(range(64, 71)); sWo = [None] + list(range(71, 74)); sXo = [None] + list(range(74, 81))
sMC, sMW = 81, 82
sT0, sT1, sT2, sT3 = 83, 84, 85, 86
sSt = 87; sRet = 88; sPfO, sPfS = 88, 89; sTs = 90; sCnt = 92; sTok = 93
sK, sV, sR, sOld, sD, sSpin, sFf = 64, 65, 66, 67, 68, 69, 70
sTri = list(range(71, 76)); sNone = list(range(76, 81))
sWoS = [12, 13, 14, 15]; sPc = [16, 17, 18]; sPart = 19; sA, sB = 20, 21; sWoM1 = 22; sRsel = 23
sFs, sFrd, sFwr, sFd = 24, 25, 26, 27
sWo7 = 87; sPart2 = 64; sPc4 = 65; sCnt2 = 36
def so(lst, i): return '0' if lst[i] is None else 's%d' % lst[i]

def v4(n): return 'v[%d:%d]' % (n, n + 3)
def rr(r, n=4):
    f, i = r
    return '%s[%d:%d]' % (f, i, i + n - 1) if n > 1 else '%s%d' % (f, i)
def mfma(d, a, b, c):
    return 'v_mfma_f32_16x16x32_bf16 %s, %s, %s, %s' % (rr(d), rr(a), rr(b), c if isinstance(c, str) else rr(c))
def cvt4(z, x, y):
    return ['v_cvt_pk_bf16_f32 v%d, v%d, v%d' % (z, x, x + 1), 'v_cvt_pk_bf16_f32 v%d, v%d, v%d' % (z + 1, x + 2, x + 3),
            'v_cvt_pk_bf16_f32 v%d, v%d, v%d' % (z + 2, y, y + 1), 'v_cvt_pk_bf16_f32 v%d, v%d, v%d' % (z + 3, y + 2, y + 3)]

vC = [0, 1]; vW = [2, 3]; vRC = [4, 5]; vRW = list(range(6, 14)); vL16 = 14; vT = 15
vPf = 16; vXd = [17, 18]; vRec = 19; vXr = [20, 21]; vPq = 22
vRX2 = [16, 17]; vRd = 18; vPoll = 19; vE = [20, 21]; vM = 22; vM2 = 23; vB = 24; vOne = 28
vOr = 13; vFA = 0; vFR = 1; vFX = 2; vFRc = 3; vWo7 = [16, 17]
def D(s): return 16 + 8 * s
def H(s): return 20 + 8 * s
KVP = [(('v', D(1)), D(1), None), (('a', 104), 16, (16, 20)), (('a', 112), 20, (20, H(1))), (('v', D(2)), D(2), None),
       (('a', 120), H(1), (H(1), H(2)))] + [(('v', D(s)), D(s), None) for s in range(3, 30)]
QA = [D(2), D(3), D(4), D(5), H(2), H(3), H(4), H(5)] + [H(s) for s in range(6, 30)]
U = [D(s) + r for s in range(6, 10) for r in range(4)]
vWo = [D(10) + r for r in range(4)] + [D(11) + r for r in range(4)] + [D(12)]; vRO = [D(12) + 1, D(12) + 2, D(12) + 3]
def ltile(qt): return ('v', D(13 + qt))
vFD = D(17)
def negm(qt): return ('v', D(18 + qt))
def pblk(n): return D(22 + n)
def qacc(i, qt): return ('v', QA[4 * i + qt])
def qfrag(qt, ds): return qacc(2 * ds, qt)
def hole(qt, n): return qacc(2 * n + 1, qt)
def stile(mode, par, kt, qt):
    if mode == 'd': return hole(qt, 2 * par + kt)
    return hole((qt - 2) * 2 + (kt >> 1), 2 * par + (kt & 1))
def pfrag(mode, par, qt, ks): return ('v', pblk(4 * par + (qt if mode == 'd' else (qt - 2) * 2 + ks)))
def oacc(dt, qt): return ('a', (qt * 8 + dt) * 4)
def fifo(n): return ('a', 128 + 4 * (n & 15))
def pctx(blk, n, qt, ks):
    if n == 0: return qfrag(2 * blk + qt, ks)
    i = ((n - 1) * 8 + qt * 4 + ks) * 4
    return ('a', 64 * blk + i) if i < 64 else ('a', 192 + 32 * blk + i - 64)
def lacc(u, qt):
    n = 2 * u + qt
    return hole(n >> 2, n & 3) if n < 16 else ('v', pblk(n - 16))
def hacc(u, qt):
    n = 2 * u + qt
    return qfrag(n >> 2, n & 3) if n < 8 else (('v', pblk(n - 6)) if n < 14 else negm(n - 14))
def ffd(u): return ('a', 224 + 4 * u) if u < 8 else ('v', vFD)
aFA, aFB, aFacc = 192, 224, 216
vG = [0, 1, 2, 3]; vOA = [4, 5, 6, 7]; vRw = [8, 9]
def vx(it): return ltile(it)[1]
BIGN = 0xf1800000
TREF = 0x41a00000
QSCALE = 0x3e0293ee
INF = 10 ** 6

class Gen:
    STAMP = [96, 97, 98, 99, 100, 101, 44, 45, 46, 47]
    def __init__(self, stamps=None, opt=None):
        self.stamps = stamps; self.opt = opt or {}
        self.blocks = []; self.tail = []; self.uid = 0; self.rares = {}
        self.ffwg = 1000 if 'noffn' in self.opt else FFWG
    def o(self, k, d): return type(d)(self.opt.get(k, d))
    def blk(self, name, tail=False):
        b = Block(name); (self.tail if tail else self.blocks).append(b); return b
    def lab(self, p):
        self.uid += 1; return 'L_%s_%d' % (p, self.uid)
    def stamp(self, name):
        out = []
        for nm, ins in ((str(name), 's_memrealtime'), (str(name) + 'c', 's_memtime')):
            if self.stamps and nm in self.stamps:
                out += ['%s s[%d:%d]' % (ins, sTs, sTs + 1), 's_waitcnt lgkmcnt(0)', 's_mov_b32 s%d, s%d' % (self.STAMP[self.stamps.index(nm)], sTs)]
        return out
    def dma(self, parts):
        out = []
        for (m0, loads) in parts:
            self.uid += 1; tag = ' ;m%d' % self.uid
            if out: out[-1].append(m0 + tag)
            else: out.append([m0 + tag])
            for ld in loads:
                grp = ld if isinstance(ld, list) else [ld]
                out.append([(t.split('@')[0].rstrip() + tag + ' @' + t.split('@')[1]) if t.startswith('buffer') else t for t in grp])
        return out
    @staticmethod
    def groups(seq):
        out = [[]]
        for t in seq:
            out[-1].append(t)
            if t.startswith('buffer'): out.append([])
        if not out[-1]: out.pop()
        return out

    def setup(self):
        b = self.blk('setup')
        if self.stamps and self.stamps[0] == 'top': b('s_memrealtime s[96:97]')
        b('s_cmp_ge_u32 s2, 256\ns_cbranch_scc1 L_end')
        b('s_load_dwordx16 s[64:79], s[0:1], 0\ns_load_dwordx8 s[80:87], s[0:1], 64')
        b('s_load_dwordx4 s[88:91], s[0:1], 96\ns_load_dwordx2 s[92:93], s[0:1], 112')
        l = 23
        b('v_lshrrev_b32 v16, 6, v0\nv_and_b32 v%d, 63, v0' % l)
        b('s_and_b32 s%d, s2, 7' % sX)
        b('v_readfirstlane_b32 s%d, v16' % sW)
        b('s_lshr_b32 s%d, s2, 3\ns_and_b32 s%d, s%d, 3\ns_lshr_b32 s%d, s2, 5' % (sY, sY, sY, sJ))
        b('s_lshl_b32 s%d, s%d, 2\ns_add_u32 s%d, s%d, s%d' % (sH, sX, sH, sH, sY))
        b('v_lshlrev_b32 v%d, 4, v%d' % (vL16, l))
        sizes = {R_WS: WS_BYTES, R_X: 2359296, R_C: 2097152, R_WK: 4194304, R_WV: 4194304, R_WQ: 4718592,
                 R_WO: 4718592, R_OUT: 2359296, R_DBG: 256, R_WR: 1152, R_GW: 1152, R_WG: 5308416,
                 R_WU: 5308416, R_WD: 5308416}
        for r, sz in sizes.items(): b('s_mov_b32 s%d, %d\ns_mov_b32 s%d, 0x20000' % (r + 2, sz, r + 3))
        b('v_lshrrev_b32 v24, 3, v%d\nv_lshrrev_b32 v25, 4, v%d\nv_and_b32 v26, 7, v%d' % (l, l, l))
        b('v_xor_b32 v26, v26, v25\nv_lshlrev_b32 v26, 4, v26')
        b('s_lshl_b32 s94, s%d, 15\ns_lshl_b32 s95, s%d, 19\ns_add_u32 s94, s94, s95' % (sJ, sW))
        b('v_lshl_add_u32 v27, v24, 10, v26\nv_add_u32 v%d, s94, v27\nv_xor_b32 v%d, 64, v%d' % (vC[0], vC[1], vC[0]))
        b('v_bfe_u32 v27, v%d, 1, 3\nv_xor_b32 v27, v27, v25\nv_lshlrev_b32 v27, 5, v27' % l)
        b('v_and_b32 v28, 1, v%d\nv_lshl_add_u32 v27, v28, 4, v27\nv_lshl_add_u32 v27, v25, 13, v27' % l)
        b('s_lshl_b32 s94, s%d, 17\ns_lshl_b32 s95, s%d, 8\ns_add_u32 s94, s94, s95' % (sW, sH))
        b('v_add_u32 v%d, s94, v27\nv_xor_b32 v%d, 0x80, v%d' % (vW[0], vW[1], vW[0]))
        b('s_lshl_b32 s94, s%d, 7\ns_lshl_b32 s95, s%d, 5\ns_add_u32 s94, s94, s95' % (sJ, sW))
        b('v_add_u32 v27, s94, v24\nv_mul_u32_u24 v27, 0x480, v27\nv_add_u32 v%d, v27, v26\nv_xor_b32 v%d, 64, v%d' % (vXd[0], vXd[1], vXd[0]))
        b('s_waitcnt lgkmcnt(0)')
        ptr = {R_C: 66, R_WK: 70, R_WV: 72, R_X: 64, R_WQ: 68, R_WO: 74, R_WR: 78, R_WG: 80, R_WU: 82,
               R_WD: 84, R_GW: 86, R_OUT: 88, R_DBG: 90, R_WS: 92}
        for r, p in ptr.items(): b('s_mov_b64 s[%d:%d], s[%d:%d]' % (r, r + 1, p, p + 1))
        for t in self.stamp(0): b(t)
        for i in range(1, 8): b('s_mov_b32 s%d, %d' % (sCo[i], (i & 3) * 7168 + (i >> 2) * 262144))
        for i in range(1, 4): b('s_mov_b32 s%d, %d' % (sWo[i], i * 31744))
        b('s_lshl_b32 s%d, s%d, 13\ns_lshl_b32 s%d, s%d, 12' % (sMC, sW, sMW, sW))
        return b

    def c_dma(self, s):
        ld = lambda i: 'buffer_load_dwordx4 v%d, %s, %s offen offset:%d lds @pj' % (vC[i & 1], srd(R_C), so(sCo, i), (i & 3) * 1024)
        return [('s_add_u32 m0, s%d, %d' % (sMC, XA + (s & 1) * 32768 + hh * 4096), [ld(4 * hh + i) for i in range(4)]) for hh in range(2)]
    def w_dma(self, R, base, tag):
        return [('s_add_u32 m0, s%d, %d' % (sMW, base),
                 ['buffer_load_dwordx4 v%d, %s, %s offen offset:%d lds @%s' % (vW[i >> 1], srd(R), so(sWo, i), i * 1024, tag) for i in range(4)])]
    def kv_dma(self, s):
        return self.dma(self.c_dma(s) + self.w_dma(R_WK, WK0 + (s & 1) * 32768, 'pj') + self.w_dma(R_WV, WV0 + (s & 1) * 32768, 'pj'))
    def adv(self, regs, n): return ['v_add_u32 v%d, 0x%x, v%d' % (r, n, r) for r in regs]
    QX = [XC, XA, XB]; QW = [WK0, WV0, WK1]
    def x_dma(self, s, regs):
        ld = lambda i: 'buffer_load_dwordx4 v%d, %s, %s offen offset:%d lds @x%d' % (regs[i & 1], srd(R_X), so(sXo, i), (i & 3) * 1024, s)
        base = self.QX[s % 3] if s >= 3 else XC
        return self.dma([('s_add_u32 m0, s%d, %d' % (sMC, base + hh * 4096), [ld(4 * hh + i) for i in range(4)]) for hh in range(2)]) + ([self.adv(regs, 128)] if s < 8 else [])
    def wq_dma(self, s): return self.dma(self.w_dma(R_WQ, self.QW[s % 3], 'w%d' % s)) + [self.adv(vW, 0x80000)]
    def kv_pf(self):
        return ['buffer_load_dword a100, v%d, %s, s%d offen @pf' % (vPf, srd(R_PF), sPfO), 's_add_u32 s%d, s%d, s%d' % (sPfO, sPfO, sPfS)]

    def start(self):
        b = self.blk('start')
        l = 23
        def flat(groups):
            for g in groups:
                for t in g:
                    b(t)
                    if ' m0,' in t: b('s_nop 0')
        flat(self.kv_dma(0))
        for t in self.adv(vC, 128) + self.adv(vW, 0x80000): b(t)
        b('v_and_b32 v24, 31, v%d\nv_lshlrev_b32 v24, 4, v24\nv_lshrrev_b32 v25, 5, v%d' % (l, l))
        b('s_lshl_b32 s94, s2, 3\ns_lshl_b32 s95, s%d, 1\ns_add_u32 s94, s94, s95\nv_add_u32 v25, s94, v25' % sW)
        b('v_mul_u32_u24 v27, 0x480, v25\nv_add_u32 v27, v27, v24')
        b('v_cmp_gt_u32 vcc, 0x80, v24\nv_mov_b32 v26, %d\nv_add_u32 v76, 0x400, v27\nv_cndmask_b32 v76, v26, v76, vcc' % OOB)
        b('buffer_load_dwordx4 v[28:31], v27, %s, 0 offen\nbuffer_load_dwordx4 v[32:35], v27, %s, 0 offen offset:512' % (srd(R_X), srd(R_X)))
        b('buffer_load_dwordx4 v[36:39], v76, %s, 0 offen' % srd(R_X))
        for k, R in enumerate((R_WR, R_GW)):
            for i in range(3): b('buffer_load_dwordx4 %s, v24, %s, 0 offen offset:%d' % (v4(40 + 12 * k + 4 * i), srd(R), 512 * i))
        b('s_getpc_b64 s[%d:%d]\nL_pc:\ns_mov_b32 s%d, L_end-L_pc' % (R_PF, R_PF + 1, R_PF + 2))
        b('s_lshr_b32 s94, s2, 3\ns_lshl_b32 s94, s94, 2\ns_add_u32 s94, s94, s%d\ns_lshl_b32 s94, s94, 10' % sW)
        b('v_min_u32 v64, 7, v%d\nv_lshlrev_b32 v64, 7, v64\nbuffer_load_dword a100, v64, %s, s94 offen @pf' % (l, srd(R_PF)))
        b('s_cmp_eq_u32 s%d, 2\ns_cselect_b64 s[%d:%d], s[%d:%d], s[%d:%d]' % (sW, R_PF, R_PF + 1, R_WK, R_WK + 1, R_WV, R_WV + 1))
        b('s_cmp_lt_u32 s%d, 2\ns_cselect_b64 s[%d:%d], s[%d:%d], s[%d:%d]' % (sW, R_PF, R_PF + 1, R_C, R_C + 1, R_PF, R_PF + 1))
        b('s_cselect_b32 s%d, s%d, s%d' % (R_PF + 2, R_C + 2, R_WK + 2))
        b('s_mov_b32 s94, 0x80000\ns_cselect_b32 s%d, 0x80, s94\ns_mov_b32 s%d, s%d' % (sPfS, sPfO, sPfS))
        b('s_lshl_b32 s94, s%d, 1\ns_add_u32 s94, s94, s%d\ns_lshl_b32 s94, s94, 3\ns_add_u32 s94, s94, s%d\ns_lshl_b32 s94, s94, 15' % (sY, sW, sJ))
        b('v_lshlrev_b32 v64, 10, v%d\nv_add_u32 v64, s94, v64\nv_cmp_gt_u32 vcc, 32, v%d' % (l, l))
        b('v_bfe_u32 v65, v%d, 1, 3\nv_lshlrev_b32 v65, 13, v65\nv_cndmask_b32 v64, v26, v64, vcc' % l)
        b('v_and_b32 v66, 1, v%d\nv_lshl_add_u32 v65, v66, 7, v65\nv_cmp_gt_u32 vcc, 16, v%d' % (l, l))
        b('s_lshl_b32 s94, s%d, 16\ns_lshl_b32 s95, s%d, 8\ns_add_u32 s94, s94, s95\nv_add_u32 v65, s94, v65\nv_cndmask_b32 v65, v26, v65, vcc' % (sJ, sH))
        b('s_cmp_lt_u32 s%d, 2\ns_cselect_b64 vcc, -1, 0\nv_cndmask_b32 v%d, v65, v64, vcc' % (sW, vPf))
        for t in self.kv_pf() + self.kv_pf(): b(t)
        tl = self.o('tlb', 0)
        if tl:
            b('v_lshlrev_b32 v64, %d, v%d' % (tl, l))
            for R in (R_WQ, R_WG, R_WU, R_WD, R_WO, R_WS): b('buffer_load_dword a100, v64, %s, 0 offen @pf' % srd(R))
        b('v_and_b32 v64, 15, v%d\nv_lshrrev_b32 v65, 4, v%d\nv_bfe_u32 v66, v%d, 1, 3' % (l, l, l))
        b('v_xor_b32 v66, v66, v65\nv_lshlrev_b32 v66, 4, v66\nv_lshl_add_u32 v66, v64, 7, v66')
        b('s_and_b32 s94, s%d, 1\ns_lshl_b32 s94, s94, 12\ns_add_u32 s94, s94, %d' % (sW, XA))
        b('v_add_u32 v%d, s94, v66\nv_xor_b32 v%d, 64, v%d' % (vRC[0], vRC[1], vRC[0]))
        b('v_add_u32 v%d, s%d, v66\nv_xor_b32 v%d, 64, v%d' % (vXr[0], sMC, vXr[1], vXr[0]))
        b('v_bfe_u32 v66, v%d, 2, 2\nv_and_b32 v67, 1, v65\nv_lshl_add_u32 v67, v67, 2, v66' % l)
        b('v_lshl_add_u32 v68, v65, 3, v66\nv_lshlrev_b32 v68, 8, v68\nv_and_b32 v69, 3, v%d\nv_lshl_add_u32 v68, v69, 3, v68' % l)
        b('s_lshr_b32 s94, s%d, 1\ns_lshl_b32 s94, s94, 14\ns_add_u32 s94, s94, %d\nv_add_u32 v68, s94, v68' % (sW, WK0))
        for u in range(8): b('v_xor_b32 v69, %d, v67\nv_lshl_add_u32 v%d, v69, 5, v68' % (u, vRW[u]))
        b('s_lshl_b32 s94, s%d, 1\ns_sub_u32 s94, 15, s94\ns_mul_i32 s94, s94, %d' % (sJ, 128 * 1152))
        for i in range(1, 8): b('s_mov_b32 s%d, %d' % (sXo[i], i * 8192) if i < 4 else 's_add_u32 s%d, s94, %d' % (sXo[i], (i & 3) * 8192))
        b('s_getreg_b32 s%d, hwreg(HW_REG_XCC_ID, 0, 4)\ns_or_b32 s%d, s%d, 0x80\nv_mov_b32 v%d, s%d' % (sXcc, sXcc, sXcc, vRec, sXcc))
        b('v_mov_b32 v72, 0\nv_mov_b32 v73, 0\nv_mov_b32 v74, 0\nv_mov_b32 v75, 0')
        b('s_lshl_b32 s94, s2, 6\ns_add_u32 s94, s94, %d\nv_lshlrev_b32 v70, 14, v%d\nv_add_u32 v70, s94, v70' % (FLAG, l))
        b('s_cmp_eq_u32 s%d, 0\ns_cselect_b32 s95, 7, 0\nv_cmp_gt_u32 vcc, s95, v%d\ns_nop 1\nv_cndmask_b32 v70, v26, v70, vcc' % (sW, l))
        b('buffer_store_dword v72, v70, %s, 0 offen sc1 @st0' % srd(R_WS))
        b('s_lshl_b32 s94, s2, 12\ns_lshl_b32 s95, s%d, 10\ns_add_u32 s94, s94, s95\ns_add_u32 s94, s94, %d' % (sW, YACC))
        b('s_cmp_lt_u32 s2, 8\ns_cselect_b32 s94, s94, %d\nv_add_u32 v71, s94, v%d' % (OOB, vL16))
        b('buffer_store_dwordx4 v[72:75], v71, %s, 0 offen sc1 @st0' % srd(R_WS))
        self.st1 = self.kv_dma(1); ne = self.o('early', 0)
        if ne:
            k = [i for i, g in enumerate(self.st1) if g[0].startswith('buffer')][ne - 1] + 1
            flat([[t.replace('@pj', '@pk') for t in g] for g in self.st1[:k]]); self.st1 = self.st1[k:]
        b('WAIT pj:0\ns_barrier')
        for t in self.kv_reads(0): b(t)
        b.autowait()
        b('v_mov_b32 v64, 0\nv_mov_b32 v65, 0')
        for i in range(12): b('v_dot2_f32_bf16 v64, v%d, v%d, v64\nv_dot2_f32_bf16 v65, v%d, v%d, v65' % (28 + i, 40 + i, 28 + i, 52 + i))
        b('s_nop 2')
        for dpp in ('quad_perm:[1,0,3,2]', 'quad_perm:[2,3,0,1]', 'row_half_mirror', 'row_mirror'):
            b('v_add_f32_dpp v64, v64, v64 %s row_mask:0xf bank_mask:0xf\nv_add_f32_dpp v65, v65, v65 %s row_mask:0xf bank_mask:0xf' % (dpp, dpp))
        b('v_mov_b32 v66, v64\nv_mov_b32 v67, v65\nv_permlane16_swap_b32 v64, v66\nv_permlane16_swap_b32 v65, v67')
        b('v_add_f32 v64, v64, v66\nv_add_f32 v65, v65, v67')
        b('v_mul_f32 v65, 0xbfb8aa3b, v65\nv_exp_f32 v65, v65')
        b('v_ashrrev_i32 v66, 31, v64\nv_or_b32 v66, 0x80000000, v66\nv_xor_b32 v66, v66, v64')
        b('v_add_f32 v65, 1.0, v65\nv_rcp_f32 v65, v65')
        b('v_and_b32 v66, 0xfffff800, v66\nv_sub_u32 v67, 0x7ff, v25\nv_or_b32 v66, v66, v67')
        b('v_mov_b32 v67, v66\nv_lshlrev_b32 v68, 2, v25\nv_add_u32 v68, %d, v68\nv_permlane32_swap_b32 v66, v67' % GBUF)
        b('v_cmp_eq_u32 vcc, 0, v24\nv_max_u32 v66, v66, v67\nv_cndmask_b32 v68, v26, v68, vcc')
        b('buffer_store_dword v65, v68, %s, 0 offen sc1 @st0' % srd(R_WS))
        b('s_lshl_b32 s94, s2, 4\ns_lshl_b32 s95, s%d, 2\ns_add_u32 s94, s94, s95\ns_add_u32 s94, s94, %d' % (sW, KEYB))
        b('v_mov_b32 v69, s94\nv_cmp_eq_u32 vcc, 0, v%d\nv_cndmask_b32 v69, v26, v69, vcc' % l)
        b('buffer_store_dword v66, v69, %s, 0 offen sc1 @st0' % srd(R_WS))
        b('s_cmp_ge_u32 s%d, 2\ns_cbranch_scc1 L_kv1' % sW)
        return b

    @staticmethod
    def cfrag(k, t): return ('a', 128 + 64 * (k & 1) + 4 * t)
    @staticmethod
    def wfrag(k, u): return ('a', 128 + 64 * (k & 1) + 32 + 4 * u)
    @staticmethod
    def kvpair(a, pr): return (pr & 3, 2 * (pr >> 3) + ((pr >> 2) & 1)) if a == 0 else (pr >> 3, pr & 7)
    def kvacc(self, a, i, jj):
        pr = [p for p in range(32) if self.kvpair(a, p) == (i >> 1, jj)][0]
        f, r = KVP[pr][0]
        return (f, r + 4 * (i & 1))
    def kv_cvt(self, pr):
        (f, r), z, tmp = KVP[pr]
        if f == 'v': return cvt4(z, r, r + 4)
        return ['v_accvgpr_read_b32 v%d, a%d' % (tmp[e >> 2] + (e & 3), r + e) for e in range(8)] + cvt4(z, tmp[0], tmp[1])
    def kv_store(self, pr):
        off = (pr >> 3) * 131072 + (pr & 7) * 1024
        return ['s_add_u32 s%d, s%d, %d' % (sT0, sSt, off & ~4095),
                'buffer_store_dwordx4 %s, v%d, %s, s%d offen offset:%d @kvs%d' % (v4(KVP[pr][1]), vL16, srd(R_WS), sT0, off & 4095, pr >= 8)]
    def kv_reads(self, k):
        p, ks = (k >> 1) & 1, k & 1; out = []
        for t in range(8):
            f = self.wfrag(k, t)
            for hf in range(2):
                out.append('ds_read_b64_tr_b16 %s, v%d offset:%d' % (rr((f[0], f[1] + 2 * hf), 2), vRW[t], p * 32768 + (32 * ks + 4 * hf) * 256))
            out.append('ds_read_b128 %s, v%d offset:%d' % (rr(self.cfrag(k, t)), vRC[ks], p * 32768 + (t >> 1) * 8192 + (t & 1) * 2048))
        return out
    @staticmethod
    def qxfrag(k, t): return ('a', 16 * k + 4 * t) if k < 6 else ('a', 128 + 48 * (k & 1) + 4 * t)
    @staticmethod
    def qwfrag(k, u): return ('a', 128 + 48 * (k & 1) + 16 + 4 * u)
    def q_reads(self, k):
        sl, ks = (k >> 1) % 3, k & 1; out = []
        for u in range(8):
            f = self.qwfrag(k, u)
            for hf in range(2):
                out.append('ds_read_b64_tr_b16 %s, v%d offset:%d' % (rr((f[0], f[1] + 2 * hf), 2), vRW[u], self.QW[sl] - WK0 + (32 * ks + 4 * hf) * 256))
            if u < 4 and k >= 6:
                out.append('ds_read_b128 %s, v%d offset:%d' % (rr(self.qxfrag(k, u)), (vRC if sl < 2 else vRX2)[ks], (self.QX[sl] if sl < 2 else 0) + u * 2048))
        return out

    def kv_phase(self, a):
        b = self.blk('kv%d' % a)
        if a == 1: b('L_kv1:')
        b.autowait()
        for t in self.stamp(1): b(t)
        BAR = self.o('kvbar', 24); SP = self.o('kvsp', 5)
        ms = []
        for k in range(16):
            order = [(i, jj) for i in range(8) for jj in range(8)]
            if k == 15: order = [(2 * self.kvpair(a, pr)[0] + h, self.kvpair(a, pr)[1]) for pr in range(32) for h in range(2)]
            for (i, jj) in order:
                A, B = (self.wfrag(k, i), self.cfrag(k, jj)) if a == 0 else (self.cfrag(k, i), self.wfrag(k, jj))
                d = self.kvacc(a, i, jj)
                ms.append(mfma(d, A, B, '0' if k == 0 else d))
        st = Stream(ms)
        gb = [128 * s + 64 + (BAR if s < 7 else 0) for s in range(8)]
        advs = [self.adv(vC, 128), self.adv(vW, 0x80000)]
        e = st.vmem(self.st1 + advs, 0, 4)
        st.vmem([self.kv_pf()], e + 1, 1)
        X0 = self.o('x0', 0)
        for s in range(8):
            w = 'WAIT w0:0 lgkm0' if s == 7 else ('WAIT pj:0 pk:0 lgkm0' if s == 0 else 'WAIT pj:0 st0:0 lgkm0')
            st.front[gb[s]] += self.stamp('kva%d' % s) + [w, 's_barrier'] + self.stamp('kvb%d' % s)
            g = gb[s] + 1
            if s <= 5:
                e = st.vmem(self.kv_dma(s + 2) + advs, g, SP)
                if X0 < s <= X0 + 3:
                    n = s - X0 - 1
                    st.front[g + 66] += ['WAIT x%d:0' % n]
                    st.ds(['ds_read_b128 %s, v%d offset:%d' % (rr(self.qxfrag(2 * n + ks, u)), vXr[ks], u * 2048) for ks in range(2) for u in range(4)], g + 67, g + 80)
                    st.front[g + 86] += ['WAIT lgkm0']
                if X0 <= s <= X0 + 3: e = st.vmem(self.x_dma(s - X0, vXd), max(e + 2, g + 87), 4)
                if s <= 3: e = st.vmem([self.kv_pf()], e + 2, 1)
                if 1 <= s <= 4:
                    e = st.vmem([['s_lshr_b32 s94, s%d, 1' % sJ, 's_xor_b32 s94, s94, %d' % (s - 1), 's_or_b32 s94, s94, s%d' % sW,
                                  's_cselect_b32 s94, 0x100000, s2', 'v_lshl_add_u32 v%d, v%d, 4, s94' % (vT, vL16),
                                  'buffer_store_byte v%d, v%d, %s, 0 offen sc1' % (vRec, vT, srd(R_DBG))]], e + 2, 1)
                if s == 4:
                    e = st.vmem([['s_lshl_b32 s94, s%d, 1' % sJ, 's_sub_u32 s94, 15, s94', 's_lshl_b32 s94, s94, 7', 's_sub_u32 s94, s94, 32',
                                  'v_lshrrev_b32 v%d, 9, v%d' % (vPq, vL16), 'v_mul_u32_u24 v%d, s94, v%d' % (vPq, vPq)],
                                 ['s_lshl_b32 s94, s%d, 7' % sJ, 's_lshl_b32 s95, s%d, 5' % sY, 's_add_u32 s94, s94, s95',
                                  'v_lshl_add_u32 v%d, v%d, 4, v%d' % (vPq, vPq, vL16), 'v_lshrrev_b32 v%d, 4, v%d' % (vPq, vPq), 'v_add_u32 v%d, s94, v%d' % (vPq, vPq)],
                                 ['v_mul_u32_u24 v%d, 0x480, v%d' % (vPq, vPq), 's_lshl_b32 s95, s%d, 7' % sW,
                                  'buffer_load_dword a101, v%d, %s, s95 offen offset:512 @pf' % (vPq, srd(R_X))],
                                 ['s_cmp_eq_u32 s%d, 0' % sW, 's_cselect_b32 s95, 0, %d' % OOB,
                                  'buffer_load_dword a101, v%d, %s, s95 offen offset:1024 @pf' % (vPq, srd(R_X))]], e + 4, 12)
                if s == 5:
                    e = st.vmem([['s_mul_i32 s94, s%d, 72' % sJ, 's_mul_i32 s95, s%d, 18' % sW, 's_add_u32 s94, s94, s95', 's_lshl_b32 s94, s94, 13',
                                  's_lshl_b32 s95, s%d, 8' % sH, 's_add_u32 s%d, s94, s95' % sT1,
                                  'v_lshrrev_b32 v%d, 5, v%d' % (vPq, vL16), 'v_min_u32 v%d, 17, v%d' % (vPq, vPq)],
                                 ['v_lshlrev_b32 v%d, 13, v%d' % (vPq, vPq), 'v_bfe_u32 v%d, v%d, 4, 1' % (vT, vL16)],
                                 ['v_lshl_add_u32 v%d, v%d, 7, v%d' % (vPq, vT, vPq), 'buffer_load_dword a101, v%d, %s, s%d offen @pf' % (vPq, srd(R_WQ), sT1)],
                                 ['v_mov_b32 v%d, v%d' % (vC[0], vXd[0]), 'v_mov_b32 v%d, v%d' % (vC[1], vXd[1])],
                                 ['v_subrev_u32 v%d, 0x400000, v%d' % (vW[0], vW[0]), 'v_subrev_u32 v%d, 0x400000, v%d' % (vW[1], vW[1])]], e + 4, 1)
                assert e < gb[s + 1], (s, e)
            elif s == 6:
                e = st.vmem(self.wq_dma(0) + self.wq_dma(1) + self.x_dma(4, vC), g, SP)
                e = st.vmem([['v_lshrrev_b32 v%d, 2, v%d' % (vT, vL16), 'buffer_load_dword v%d, v%d, %s, 0 offen sc1' % (vT, vT, srd(R_DBG))]], e + 2, 1)
                assert e < gb[7], e
        for k in range(15):
            lo = 64 * k + 2 if k % 2 == 0 else gb[k >> 1] + 1
            st.ds(self.kv_reads(k + 1), lo, 64 * k + 57)
        g = 960
        fix = ['v_mov_b32 v%d, v%d' % (vRC[0], vXr[0]), 'v_mov_b32 v%d, v%d' % (vRC[1], vXr[1])]
        if a == 1: fix += ['v_subrev_u32 v%d, 0x4000, v%d' % (r, r) for r in vRW]
        st.valu([(g + 1, g + 12, t) for t in fix])
        st.salu(['s_lshl_b32 s%d, s%d, 19' % (sSt, sH), 's_lshl_b32 s94, s%d, 13\ns_add_u32 s%d, s%d, s94' % (sJ, sSt, sSt),
                 's_and_b32 s94, s%d, 1\ns_lshl_b32 s94, s94, 16\ns_add_u32 s%d, s%d, s94' % (sW, sSt, sSt)]
                + (['s_add_u32 s%d, s%d, %d' % (sSt, sSt, VBUF)] if a else []), g + 1)
        st.vmem(self.wq_dma(2), g + 2, 6)
        st.ds(self.q_reads(0), g + 30, g + 58)
        e = g; sg = g + 10
        NQ = self.o('nq', 12)
        for pr in range(32 - NQ):
            e = st.valu([(g + 2 * pr + 6, g + 63, t) for t in self.kv_cvt(pr)], e, cap=self.o('kcap', 8))
            if pr < 8: sg = st.vmem([self.kv_store(pr)], max(sg, e + 1), 1) + 5
        assert sg < 1030, sg
        st.emit(b)
        if a == 0: b('s_branch L_q')
        return b

    def spin(self, load, check, back):
        lab = self.lab('spin'); b = self.blk(lab, tail=True)
        b('%s:\ns_mov_b32 s%d, 0x4000\n%s_l:\ns_sleep 2' % (lab, sSpin, lab))
        for t in load: b(t)
        b('s_waitcnt vmcnt(0)')
        for t in check: b(t)
        b('s_cbranch_scc1 %s' % back)
        b('s_sub_u32 s%d, s%d, 1\ns_cmp_lg_u32 s%d, 0\ns_cbranch_scc1 %s_l\ns_branch %s' % (sSpin, sSpin, sSpin, lab, back))
        return lab
    def flag_addr(self, kind, mask, nlanes, stride):
        return ['v_mul_u32_u24 v%d, %d, v%d' % (vPoll, stride * 4, vL16),
                's_and_b32 s94, s2, 0x%x\ns_lshl_b32 s94, s94, 6\ns_add_u32 s94, s94, %d\nv_add_u32 v%d, s94, v%d' % (mask, FLAG + kind * 16384, vPoll, vPoll),
                'v_mov_b32 v%d, %d' % (vM2, OOB),
                'v_cmp_gt_u32 vcc, %d, v%d\ns_nop 1\nv_cndmask_b32 v%d, v%d, v%d, vcc' % (nlanes * 16, vL16, vPoll, vM2, vPoll)]
    def next_flag(self): return 'v_add_u32 v%d, 0x4000, v%d' % (vPoll, vPoll)
    def poll(self, nlanes):
        load = ['buffer_load_dword v%d, v%d, %s, 0 offen sc1' % (vT, vPoll, srd(R_WS))]
        chk = ['v_cmp_eq_u32 vcc, 1, v%d' % vT, 's_and_b32 s94, vcc_lo, %d' % ((1 << nlanes) - 1), 's_cmp_eq_u32 s94, %d' % ((1 << nlanes) - 1)]
        back = self.lab('back')
        return load, chk + ['s_cbranch_scc0 %s' % self.spin(load, chk, back), back + ':']
    def fence(self, ins):
        lab = self.lab('fence'); back = self.lab('back')
        self.blk(lab, tail=True)('%s:\n%s\ns_waitcnt vmcnt(0)\ns_branch %s' % (lab, ins, back))
        return ['s_cmp_eq_u32 s%d, 0' % sLocal, 's_cbranch_scc1 %s' % lab, back + ':']
    def publish(self, kind, release=False):
        return (self.fence('buffer_wbl2 sc1') if release else []) + [
                's_lshl_b32 s94, s2, 6', 's_add_u32 s94, s94, %d' % (FLAG + kind * 16384), 's_cmp_eq_u32 s%d, 0' % sW,
                's_cselect_b32 s94, s94, 0x8000000', 'v_lshl_add_u32 v%d, v%d, 21, s94' % (vM, vL16), 'v_mov_b32 v%d, 1' % vM2,
                'buffer_store_dword v%d, v%d, %s, 0 offen sc1' % (vM2, vM, srd(R_WS))]
    def start_check(self):
        chk = ['v_and_b32 v%d, 0x80808080, v%d' % (vM, vT), 'v_cmp_ne_u32 vcc, 0x80808080, v%d' % vM, 's_cmp_eq_u64 vcc, 0']
        back = self.lab('back')
        lab = self.spin(['v_lshrrev_b32 v%d, 2, v%d' % (vT, vL16), 'buffer_load_dword v%d, v%d, %s, 0 offen sc1' % (vT, vT, srd(R_DBG))], chk, back)
        return ['\n'.join(chk + ['s_cbranch_scc0 %s' % lab, back + ':']),
                's_and_b32 s94, s%d, 3\ns_lshl_b32 s94, s94, 3\nv_bfe_u32 v%d, v%d, s94, 8' % (sX, vM, vT),
                'v_cmp_ne_u32 vcc, s%d, v%d\ns_lshr_b32 s94, s%d, 2\ns_lshl_b32 s94, 0x55555555, s94\ns_or_b32 s95, vcc_lo, vcc_hi\n'
                's_and_b32 s95, s95, s94\ns_cselect_b32 s%d, 0, 1' % (sXcc, vM, sX, sLocal)]
    def token_ops(self):
        regs = [ltile(q)[1] + r for q in range(4) for r in range(4)]
        K, K1, K2 = regs[0], regs[1], regs[2]
        out = ['v_max3_u32 v%d, v%d, v%d, v%d' % (K, K, regs[1], regs[2])]
        for i in range(3, 15, 2): out.append('v_max3_u32 v%d, v%d, v%d, v%d' % (K, K, regs[i], regs[i + 1]))
        out.append('v_max_u32 v%d, v%d, v%d' % (K, K, regs[15]))
        for dpp in ('quad_perm:[1,0,3,2]', 'quad_perm:[2,3,0,1]', 'row_half_mirror', 'row_mirror'):
            out.append('v_max_u32_dpp v%d, v%d, v%d %s row_mask:0xf bank_mask:0xf' % (K, K, K, dpp))
        for sw in ('v_permlane32_swap_b32', 'v_permlane16_swap_b32'):
            out += ['v_mov_b32 v%d, v%d' % (K1, K), '%s v%d, v%d' % (sw, K, K1), 'v_max_u32 v%d, v%d, v%d' % (K, K, K1)]
        out += ['v_and_b32 v%d, 0x7ff, v%d' % (K1, K), 'v_sub_u32 v%d, 0x7ff, v%d' % (K1, K1), 'v_and_b32 v%d, 0xfffff800, v%d' % (K, K),
                'v_readfirstlane_b32 s%d, v%d' % (sTok, K1), 'v_not_b32 v%d, v%d' % (K2, K), 'v_ashrrev_i32 v%d, 31, v%d' % (K2, K2),
                'v_or_b32 v%d, 0x80000000, v%d' % (K2, K2), 'v_xor_b32 v%d, v%d, v%d' % (K, K, K2),
                'v_mul_f32 v%d, 0xbfb8aa3b, v%d' % (K, K), 'v_exp_f32 v%d, v%d' % (K, K), 'v_add_f32 v%d, 1.0, v%d' % (K, K),
                'v_rcp_f32 v%d, v%d' % (K, K), 'v_readfirstlane_b32 s%d, v%d' % (sRsel, K)]
        return out

    def ffn_scalars(self):
        return ['s_sub_u32 s%d, s2, %d' % (sA, FFWG), 's_lshr_b32 s%d, s%d, 3' % (sA, sA), 's_mul_i32 s%d, s%d, 18' % (sB, sX),
                's_add_u32 s%d, s%d, s%d' % (sA, sA, sB), 's_lshl_b32 s%d, s%d, 6' % (sA, sA),
                's_cmp_ge_u32 s2, %d\ns_cselect_b32 s%d, s%d, 0x400000' % (self.ffwg, sFf, sA),
                's_cmp_lt_u32 s%d, 2\ns_cselect_b64 s[%d:%d], s[%d:%d], s[%d:%d]' % (sW, R_PF, R_PF + 1, R_WG, R_WG + 1, R_WU, R_WU + 1),
                's_mov_b32 s%d, %d' % (R_PF + 2, 5308416)]
    def ffn_scalars2(self):
        return ['s_cmp_ge_u32 s2, %d\ns_cselect_b32 s%d, s%d, 0x40000000' % (self.ffwg, sFs, sFf), 's_mov_b32 s%d, %d' % (sFwr, WK0), 's_mov_b32 s%d, 0' % sFrd,
                's_mul_i32 s%d, s%d, 576' % (sFd, sFf), 's_mul_i32 s%d, s%d, 288' % (sA, sW), 's_add_u32 s%d, s%d, s%d' % (sFd, sFd, sA)]
    def ffn_addr(self):
        t0, t1 = U[0], U[1]
        return [
                's_and_b32 s94, s%d, 1\ns_lshl_b32 s94, s94, 6\nv_lshrrev_b32 v%d, 6, v%d\nv_add_u32 v%d, s94, v%d' % (sW, t0, vL16, t0, t0),
                'v_mul_u32_u24 v%d, 0x2400, v%d' % (t0, t0), 'v_lshrrev_b32 v%d, 4, v%d' % (t1, vL16), 'v_and_b32 v%d, 32, v%d' % (t1, t1),
                'v_xor_b32 v%d, v%d, v%d' % (t1, t1, vL16), 'v_and_b32 v%d, 0x30, v%d' % (t1, t1), 'v_add_u32 v%d, v%d, v%d' % (vFA, t0, t1),
                'v_lshrrev_b32 v%d, 8, v%d' % (t0, vL16), 'v_lshlrev_b32 v%d, 4, v%d' % (vFX, t0), 'v_add_u32 v%d, %d, v%d' % (vFX, XT, vFX),
                'v_xor_b32 v%d, s%d, v%d' % (t1, sW, t0), 'v_and_b32 v%d, 1, v%d' % (t1, t1), 'v_lshlrev_b32 v%d, 5, v%d' % (t1, t1),
                'v_lshl_add_u32 v%d, v%d, 9, v%d' % (t1, t0, t1), 'v_and_b32 v%d, 0xc0, v%d' % (t0, vL16), 'v_add_u32 v%d, v%d, v%d' % (t1, t1, t0),
                'v_bfe_u32 v%d, v%d, 4, 2' % (t0, vL16), 'v_lshl_add_u32 v%d, v%d, 3, v%d' % (t1, t0, t1),
                's_lshr_b32 s94, s%d, 1\ns_lshl_b32 s94, s94, 13\ns_add_u32 s94, s94, %d\nv_add_u32 v%d, s94, v%d' % (sW, WK0, vFR, t1)]
    def ffn_dma(self):
        lds = [['s_add_u32 s%d, s%d, %d' % (sA, sFs, i * (16 * 9216 - 1024)),
                'buffer_load_dwordx4 v%d, %s, s%d offen offset:%d lds @fd' % (vFA, srd(R_PF), sA, i * 1024)] for i in range(4)]
        lds[3] += ['s_add_u32 s%d, s%d, %d' % (sFs, sFs, 128 * 9216)]
        return self.dma([('s_add_u32 m0, s%d, s%d' % (sFwr, sMW), lds)]) + [['s_add_u32 s%d, s%d, 16384' % (sFwr, sFwr)],
                ['s_cmp_eq_u32 s%d, %d\ns_cselect_b32 s%d, %d, s%d' % (sFwr, WV1, sFwr, WK0, sFwr)]]
    def xt_dma(self):
        return self.dma([('s_lshr_b32 s94, s%d, 2\ns_add_u32 m0, s94, %d' % (sMW, XT),
                          [['s_mul_i32 s%d, s%d, 1152' % (sA, sTok), 's_lshr_b32 s94, s%d, 2' % sMW, 's_add_u32 s%d, s%d, s94' % (sA, sA),
                            'buffer_load_dwordx4 v%d, %s, s%d offen lds @fd' % (vL16, srd(R_X), sA)]])])
    def ffn_step(self):
        rd = []
        for ks in range(4):
            rd += ['ds_read_b64_tr_b16 a[%d:%d], v%d offset:%d' % (aFA + 4 * ks + 2 * hf, aFA + 4 * ks + 2 * hf + 1, vFRc, (32 * ks + 4 * hf) * 64) for hf in range(2)]
            rd.append('ds_read_b128 a[%d:%d], v%d offset:%d' % (aFB + 4 * ks, aFB + 4 * ks + 3, vFX, ks * 64))
        ms = [mfma(('a', aFacc), ('a', aFA + 4 * ks), ('a', aFB + 4 * ks), ('a', aFacc)) for ks in range(4)]
        return ms, rd
    def ffn_a(self):
        return ['v_lshrrev_b32 v%d, 8, v%d' % (U[0], vL16), 's_lshl_b32 s94, s%d, 6\ns_add_u32 s94, s94, %d\nv_lshl_add_u32 v%d, v%d, 4, s94' % (sW, FS, U[0], U[0]),
                'ds_write_b128 v%d, a[%d:%d]' % (U[0], aFacc, aFacc + 3)]
    def ffn_b(self, b):
        lab = self.lab('ffb'); back = self.lab('back')
        b('s_cmp_ge_u32 s2, %d\ns_cbranch_scc1 %s\n%s:' % (self.ffwg, lab, back))
        t = self.blk(lab, tail=True)
        a0, g0, u0, e0, ad, hf = 0, 1, 2, 3, 4, U[0]
        t(lab + ':\ns_waitcnt lgkmcnt(0)\ns_barrier')
        t('v_bfe_u32 v%d, v%d, 4, 5\nv_lshlrev_b32 v%d, 2, v%d\nv_add_u32 v%d, %d, v%d' % (a0, vL16, ad, a0, ad, FS, ad))
        t('ds_read_b32 v%d, v%d\nds_read_b32 v%d, v%d offset:128' % (g0, ad, u0, ad))
        t('v_lshlrev_b32 v%d, 1, v%d\nv_add_u32 v%d, s%d, v%d' % (ad, a0, ad, sOld, ad))
        t('v_lshrrev_b32 v5, 8, v%d\nv_lshlrev_b32 v6, 3, v5\nv_add_u32 v6, s%d, v6\nv_lshlrev_b32 v7, 4, v5\nv_add_u32 v7, s%d, v7' % (vL16, sOld, sOld))
        t('s_waitcnt lgkmcnt(0)')
        t('v_mul_f32 v%d, 0xbfb8aa3b, v%d\nv_exp_f32 v%d, v%d\nv_mul_f32 v%d, v%d, v%d\nv_add_f32 v%d, 1.0, v%d\nv_rcp_f32 v%d, v%d\ns_nop 0' % (e0, g0, e0, e0, g0, g0, u0, e0, e0, e0, e0))
        t('v_mul_f32 v%d, v%d, v%d\nv_cvt_pk_bf16_f32 v%d, v%d, v%d\nds_write_b16 v%d, v%d\ns_waitcnt lgkmcnt(0)' % (g0, g0, e0, g0, g0, g0, ad, g0))
        t('ds_read_b64 v[%d:%d], v6\nds_read_b64 v[%d:%d], v6 offset:32' % (hf, hf + 1, hf + 2, hf + 3))
        t('v_lshrrev_b32 v8, 2, v%d\nv_add_u32 v9, s%d, v8\nv_cmp_gt_u32 vcc, 64, v8\nv_mov_b32 v10, %d' % (vL16, sOld, OOB))
        t('s_and_b32 s94, s%d, 1\ns_lshl_b32 s94, s94, 12\ns_mul_i32 s95, s%d, 576\ns_add_u32 s94, s94, s95\ns_add_u32 s%d, s94, %d' % (sX, sW, sA, YACC))
        t('v_cndmask_b32 v10, v10, v8, vcc\ns_waitcnt lgkmcnt(0)')
        dst = [stile('s', 1, kt, qt) for kt in range(4) for qt in (2, 3)] + [('v', U[4])]
        for u in range(9): t(mfma(dst[u], ffd(u), ('v', hf), '0'))
        for u in range(9): t('ds_write_b128 v7, %s offset:%d' % (rr(dst[u]), 256 + 64 * u))
        t('s_waitcnt lgkmcnt(0)')
        for i in range(3): t('ds_read_b32 v%d, v9 offset:%d' % (i, 256 + 256 * i))
        t('s_waitcnt lgkmcnt(0)')
        for i in range(3): t('buffer_atomic_add_f32 v%d, v%d, %s, s%d offen offset:%d' % (i, 8 if i < 2 else 10, srd(R_WS), sA, 256 * i))
        t('s_branch ' + back)

    def at_dma(self, kpart=True, vpart=True, m0=None):
        parts = []
        for on, s, off in ((kpart, sK, 0), (vpart, sV, 16384)):
            if not on: continue
            lds = [['buffer_load_dwordx4 v%d, %s, s%d offen offset:%d sc1 lds @kv' % (vL16, srd(R_WS), s, i * 1024)] for i in range(4)]
            lds[3].append('s_add_u32 s%d, s%d, 16384' % (s, s))
            parts.append(('s_add_u32 m0, s%d, %d' % ((sOld, off) if m0 is None else (sMW, m0 + off)), lds))
        return self.dma(parts)
    def k_read(self, n, kt, ds): return 'ds_read_b128 %s, v%d offset:%d' % (rr(fifo(n)), vRd, (kt * 4 + ds) * 1024)
    def v_read(self, n, ks, dt): return 'ds_read_b128 %s, v%d offset:%d' % (rr(fifo(n)), vRd, 16384 + (ks * 8 + dt) * 1024)
    def ring_step(self, st, bar, wait, nxt, post=(), hi=None):
        st.salu(['s_add_u32 s%d, s%d, s%d' % (sOld, sR, sMW), 's_add_u32 s%d, s%d, 32768' % (sR, sR),
                 's_cmp_eq_u32 s%d, 98304\ns_cselect_b32 s%d, 0, s%d' % (sR, sR, sR)], bar - 4)
        st.gaps[bar - 1].append('v_add_u32 v%d, s%d, v%d' % (vRd, sR, vL16))
        st.front[bar] = [wait, 's_barrier'] + list(post) + st.front[bar]
        hi = st.n if hi is None else hi
        cand = [x for x in range(bar, hi) if st.cost(x) <= 4]
        if len(cand) < len(nxt): cand = sorted(sorted(range(bar, hi), key=lambda x: (st.cost(x), x))[:len(nxt)])
        pos = [cand[i * len(cand) // len(nxt)] for i in range(len(nxt))]
        for g, t in zip(pos, nxt): st.front[g].append(t)
        return pos

    def q_phase(self):
        b = self.blk('q')
        b('L_q:')
        b.autowait()
        for t in self.stamp(2): b(t)
        ms = []
        for k in range(18):
            order = [(i, qt) for i in range(8) for qt in range(4)] if k < 17 else [(i, qt) for qt in range(4) for i in range(8)]
            ms += [mfma(qacc(i, qt), self.qwfrag(k, i), self.qxfrag(k, qt), '0' if k == 0 else qacc(i, qt)) for (i, qt) in order]
        G0 = len(ms); G1 = G0 + 16; G2 = G1 + 32
        for qt in range(4):
            S = stile('d', 1, 0, qt)
            ms += [mfma(S, fifo(ds), qfrag(qt, ds), S if (ds or qt < 2) else '0') for ds in range(4)]
        m0, _, ini0 = self.qk_step('d', 0, 0, 0, True, qmajor=True)
        m1, _, ini1 = self.qk_step('d', 1, 1, 8, True)
        ms += m0 + m1
        st = Stream(ms); G = st.n
        gb = [64 * s + 32 for s in range(9)]
        SP = self.o('qsp', 5)
        st.vmem(self.x_dma(5, vC), 2, 4)
        for s in range(9):
            w = 'WAIT w%d:0 x%d:0 lgkm0' % (s + 1, s + 1) if s < 8 else 'WAIT kv:1 lgkm0'
            if s == 1: w += ' kvs0:0'
            st.front[gb[s]] += self.stamp('qa%d' % s) + [w, 's_barrier'] + self.stamp('qb%d' % s)
            g = gb[s] + 1
            if s == 1: g = st.vmem([self.publish(F_KV, True)], g + 1, 1) + 2
            if s <= 2: e = st.vmem(self.wq_dma(s + 3), max(g, 40), 8)
            elif s <= 5: e = st.vmem(self.wq_dma(s + 3) + self.x_dma(s + 3, vC), g, SP - 1)
            elif s == 6: e = st.vmem(self.at_dma(True, False, XC), g, SP)
            elif s == 7: e = st.vmem(self.at_dma(True, True, XA), g, SP)
            else: e = e8 = st.vmem(self.at_dma(True, True, XB) + self.xt_dma(), g, SP)
            assert s == 8 or e <= gb[s + 1], (s, e)
            if s == 5: e5 = e
        NQ = self.o('nq', 12)
        e = st.valu([(4 if pr >= 29 else 0, pr - 1, t) for pr in range(32 - NQ, 32) for t in self.kv_cvt(pr)])
        span = self.o('stspan', 17) * 32
        sg = []
        for n in range(24): sg.append(st.vmem([self.kv_store(8 + n)], 34 + n * span // 24, 1))
        assert sg[-1] < G0 + 4 and sg[15] < G0 - 8, sg
        for k in range(17):
            lo = 32 * k + (1 if k & 1 else 0)
            st.ds(self.q_reads(k + 1), lo, 32 * k + 27)
        st.ds([self.k_read(n, n >> 2, n & 3) for n in range(8)], gb[8] + 1, gb[8] + 22)
        st.ds([self.k_read(8 + n, 2 + (n >> 2), n & 3) for n in range(8)], G0 + 2, G2 - 8)
        e = st.valu([(36, INF, 'v_add_u32 v%d, 0x10000, v%d' % (vRX2[i], vRC[i])) for i in range(2)] + [(40, gb[1] - 2, t) for t in self.start_check()])
        st.salu(self.o_scalars() + self.ffn_scalars(), gb[1] + 12)
        g = st.vmem([['s_mov_b32 s%d, %d' % (sT1, KEYB)]] + [['buffer_load_dwordx4 %s, v%d, %s, s%d offen offset:%d sc1' % (rr(ltile(i)), vL16, srd(R_WS), sT1, 1024 * i)]
                                                            for i in range(4)], sg[10] + 1, 6)
        bg = [(sg[3] + 1, 'v_mov_b32 v%d, 0x3f803f80' % (vOne + i)) for i in range(4)]
        bg += [(0, t) for t in ('v_bfe_u32 v%d, v%d, 4, 4' % (U[0], vL16), 'v_lshrrev_b32 v%d, 8, v%d' % (U[1], vL16),
                                'v_lshlrev_b32 v%d, 2, v%d' % (U[1], U[1]), 'v_sub_u32 v%d, v%d, v%d' % (U[0], U[0], U[1]), 'v_mov_b32 v%d, 0x%x' % (U[1], BIGN))]
        bg += [(0, 'v_cmp_gt_i32 vcc, %d, v%d\ns_nop 1\nv_cndmask_b32 v%d, 0, v%d, vcc' % (r, U[0], vB + r, U[1])) for r in range(4)]
        bg += [(sg[6] + 1, 'v_lshrrev_b32 v%d, 4, v%d' % (U[0], vL16))]
        for i in range(9):
            bg += [(0, t) for t in ('v_add_u32 v%d, %d, v%d' % (U[1], 64 * i, U[0]), 'v_mul_u32_u24 v%d, 0xe39, v%d' % (U[2], U[1]),
                                    'v_lshrrev_b32 v%d, 16, v%d' % (U[2], U[2]), 'v_mul_u32_u24 v%d, 0x360, v%d' % (U[2], U[2]),
                                    'v_lshl_add_u32 v%d, v%d, 4, v%d' % (vWo[i], U[1], U[2]))]
            if i & 3: bg.append((0, 'v_subrev_u32 v%d, %d, v%d' % (vWo[i], (i & 3) * 1024, vWo[i])))
        bg += [(0, t) for t in ('v_lshrrev_b32 v%d, 2, v%d' % (U[1], U[0]), 'v_mul_u32_u24 v%d, 0x120, v%d' % (U[1], U[1]),
                                'v_and_b32 v%d, 3, v%d' % (U[2], U[0]), 'v_lshl_add_u32 v%d, v%d, 3, v%d' % (vRO[1], U[2], U[1]),
                                'v_add_u32 v%d, %d, v%d' % (vRO[0], WK0, vRO[1]), 'v_add_u32 v%d, %d, v%d' % (vRO[2], 7 * 9216, vRO[1]))]
        e = st.valu([(192, INF, 'v_accvgpr_write_b32 a%d, 0' % i) for i in range(0)], e)
        fa = [(0, INF, t) for t in self.flag_addr(F_KV, 31, 8, 32)]
        ea = st.valu(fa, e)
        ld, chk = self.poll(8)
        st.vmem([ld], max(ea + 1, gb[4] - 20), 1)
        e = st.valu([(x, INF, t) for (x, t) in bg], ea)
        e = st.valu([(192, INF, 'v_accvgpr_write_b32 a%d, 0' % i) for i in range(32)], e)
        e = st.valu([(g + 50, gb[7], t) for t in self.token_ops()] + [(0, INF, 'v_mov_b32 v%d, 0' % (ltile(q)[1] + r)) for q in range(4) for r in range(4)], e)
        st.gaps[gb[6] - 6] += chk + self.fence('buffer_inv sc1')
        st.salu(['s_lshl_b32 s%d, s%d, 19' % (sK, sH), 's_add_u32 s%d, s%d, s%d' % (sK, sK, sMW), 's_add_u32 s%d, s%d, %d' % (sV, sK, VBUF - KBUF),
                 's_mov_b32 s%d, %d' % (sR, XC)], gb[6] - 5)
        st.salu(self.ffn_scalars2(), gb[6] + 4)
        e = st.valu([(max(e5, gb[6]), gb[8], t) for t in self.ffn_addr() + ['v_add_u32 v%d, %d, v%d' % (vRd, XC, vL16), self.next_flag()]
                     + ['v_accvgpr_write_b32 a%d, 0' % i for i in range(32, 128)]], e)
        st.salu(['s_lshl_b32 s%d, s%d, 3' % (sD, sJ), 's_lshl_b32 s94, s%d, 1\ns_add_u32 s%d, s%d, s94' % (sW, sD, sD)] + self.mask_scalars((-1, 0, 1)), gb[8] - 14)
        seq = []
        def ep(qt):
            for ds in range(4):
                x, y = qacc(2 * ds, qt)[1], qacc(2 * ds + 1, qt)[1]
                ops = ['v_mul_f32 v%d, 0x%x, v%d' % (r, QSCALE, r) for r in list(range(x, x + 4)) + list(range(y, y + 4))] + cvt4(x, x, y)
                seq.extend((G0 - 32 + qt * 8 + 2 * ds + 5, G0 + 4 * qt - 2, t) for t in ops)
            if qt < 2:
                S = stile('d', 1, 0, qt)[1]; o = qt + 3
                seq.append((0, G0 + 4 * qt - 2, 'v_mov_b32 v%d, s%d' % (vM, sNone[o])))
                seq.extend((0, G0 + 4 * qt - 2, 'v_fma_f32 v%d, v%d, s%d, v%d' % (S + r, vB + r, sTri[o], vM)) for r in range(4))
        def mx(qt):
            S = stile('d', 1, 0, qt)[1]; e, d = G0 + 4 * qt + 7, G1 + 8 * qt - 2
            ops = ['v_max3_f32 v%d, v%d, v%d, v%d' % (U[0], S, S + 1, S + 2), 'v_max_f32 v%d, v%d, v%d' % (U[0], U[0], S + 3)]
            for sw in ('v_permlane32_swap_b32', 'v_permlane16_swap_b32'):
                ops += ['v_mov_b32 v%d, v%d' % (U[1], U[0]), '%s v%d, v%d' % (sw, U[0], U[1]), 'v_max_f32 v%d, v%d, v%d' % (U[0], U[0], U[1])]
            ops += ['v_sub_f32 v%d, 0x%x, v%d' % (negm(qt)[1] + r, TREF | 0x80000000, U[0]) for r in range(4)]
            seq.extend((e, d, t) for t in ops)
        def ini(lst, base, i): seq.extend((0, base + lst[i][0] - 2, t) for t in lst[i][1])
        ep(0); ep(1); ep(2); ep(3)
        mx(0); ini(ini0, G1, 0); ini(ini0, G1, 1); mx(1); ini(ini0, G1, 2); ini(ini0, G1, 3); mx(2); mx(3)
        seq += [(0, INF, t) for t in ['s_sub_u32 s%d, s%d, 2' % (sD, sD)] + self.mask_scalars((-1, 0, 1))]
        seq += [(0, INF, 'v_accvgpr_write_b32 a%d, 0' % (aFacc + r)) for r in range(4)]
        sm = self.softmax('d', 0)
        for p in range(16):
            if p in (6, 8, 12, 13): ini(ini1, G2, (6, 8, 12, 13).index(p))
            seq += [(G1 + 8 * (p >> 2) + 4 * ((p >> 1) & 1) + 7, INF, t) for g in range(4 * p, 4 * p + 4) for t in sm[g]]
        self.ring_step(st, G2 + 11, 'WAIT kv:1 kvs1:0 lgkm0', [self.v_read(n, 0, n) for n in range(6)])
        st.vmem([self.publish(F_KV2, True)], G2 + 14, 1)
        pw = ['s_lshl_b32 s94, s%d, 5' % sX, 's_lshr_b32 s95, s2, 3', 's_add_u32 s94, s94, s95', 's_lshl_b32 s94, s94, 2', 's_add_u32 s94, s94, s%d' % sW,
              's_mul_i32 s%d, s94, 4608' % sT1, 'v_lshlrev_b32 v12, 3, v%d' % vL16, 'v_min_u32 v12, 0x1180, v12',
              'buffer_load_dword v11, v12, %s, s%d offen @pf' % (srd(R_WO), sT1)]
        if self.o('fdeep', 1) == 2: st.vmem([pw] + self.ffn_dma() + self.ffn_dma(), max(e8 + 4, G0 + 8), self.o('fsp', 5))
        else:
            st.vmem([pw], max(e8 + 4, G0 + 8), 1)
            st.vmem(self.ffn_dma(), G2 + 15, 3)
        st.valu(seq, gb[8] + 1)
        for g in range(G): st.tail[g] += self.stamp('q%d' % g)
        st.emit(b)
        g68 = [[] for _ in range(68)]
        self.check(g68, 'd', 0, 'd')
        b.autowait()
        for t in g68[64]: b(t)
        b('s_sub_u32 s%d, s%d, 2\ns_lshl_b32 s%d, s%d, 1\ns_mov_b32 s%d, 5' % (sD, sD, sCnt, sJ, sCnt2))
        for t in g68[67] + self.stamp(3): b(t)
        b('s_cmp_eq_u32 s%d, 0\ns_cbranch_scc1 L_dd_one' % sJ)
        b('s_sub_u32 s%d, s%d, 1\ns_cmp_lt_u32 s2, %d\ns_cbranch_scc1 L_dp' % (sCnt, sCnt, self.ffwg))
        return b

    def qk_step(self, mode, par, half, n0, masked, qmajor=False):
        ms, fr, inits = [], [], []
        if mode == 'd':
            tiles = [(kt, qt) for qt in range(4) for kt in range(2)] if qmajor else [(kt, qt) for kt in range(2) for qt in (2, 3, 0, 1)]
            nk = 2
        else:
            tiles = [(kt, qt) for kt in range(4) for qt in (2, 3)]; nk = 4
        use = {}
        for (kt, qt) in tiles:
            S = stile(mode, par, kt, qt)
            m = masked and (qt < 2 if mode == 'd' else True)
            if m:
                o = (qt & 1) - kt + 3
                inits.append((len(ms), ['v_add_f32 v%d, s%d, v%d' % (vM, sNone[o], negm(qt)[1])]
                              + ['v_fma_f32 v%d, v%d, s%d, v%d' % (S[1] + r, vB + r, sTri[o], vM) for r in range(4)]))
            for ds in range(4):
                use.setdefault((kt, ds), []).append(len(ms))
                ms.append(mfma(S, fifo(n0 + kt * 4 + ds), qfrag(qt, ds), S if (ds or m) else negm(qt)))
        for kt in range(nk):
            for ds in range(4):
                fr.append((self.k_read(n0 + kt * 4 + ds, (2 * half if mode == 'd' else 0) + kt, ds), use[(kt, ds)][0], use[(kt, ds)][-1]))
        return ms, fr, inits
    def pv_step(self, mode, par, half, n0):
        ms, fr = [], []
        for dt in range(8):
            if mode == 'd':
                fr.append((self.v_read(n0 + dt, half, dt), len(ms), len(ms) + 3))
                for qt in range(4): ms.append(mfma(oacc(dt, qt), fifo(n0 + dt), pfrag('d', par, qt, 0), oacc(dt, qt)))
            else:
                for ks in range(2): fr.append((self.v_read(n0 + 2 * dt + ks, ks, dt), len(ms) + ks, len(ms) + 2 + ks))
                for qt in (2, 3):
                    for ks in range(2): ms.append(mfma(oacc(dt, qt), fifo(n0 + 2 * dt + ks), pfrag('s', par, qt, ks), oacc(dt, qt)))
        return ms, fr, []
    def ones_step(self, mode, par):
        return [mfma(ltile(qt), ('v', vOne), pfrag(mode, par, qt, ks), ltile(qt))
                for qt in (range(4) if mode == 'd' else (2, 3)) for ks in range(1 if mode == 'd' else 2)], [], []
    def pairs(self, mode, par):
        out = []
        for qt in (range(4) if mode == 'd' else (2, 3)):
            for ks in range(1 if mode == 'd' else 2):
                P = pfrag(mode, par, qt, ks)[1]
                for h in range(2):
                    S = stile(mode, par, 2 * ks + h, qt)[1]
                    out += [(S + 2 * e, P + 2 * h + e) for e in range(2)]
        return out
    def softmax(self, mode, par):
        g = [[] for _ in range(68)]
        prs = self.pairs(mode, par)
        for p, (S, P) in enumerate(prs):
            g[4 * p].append('v_exp_f32 v%d, v%d' % (vE[0], S))
            g[4 * p + 1].append('v_exp_f32 v%d, v%d' % (vE[1], S + 1))
            g[4 * p + 2].append('v_cvt_pk_bf16_f32 v%d, v%d, v%d' % (P, vE[0], vE[1]))
            if p == 1: g[4 * p + 3].append('v_or_b32 v%d, v%d, v%d' % (vOr, prs[0][1], P))
            elif p & 1: g[4 * p + 3].append('v_or3_b32 v%d, v%d, v%d, v%d' % (vOr, prs[p - 1][1], P, vOr))
        return g
    def check(self, g, mode, par, nxt):
        back = self.lab('back'); tr = self.lab('tr')
        self.blk(tr, tail=True)('%s:\ns_call_b64 s[%d:%d], %s\ns_branch %s' % (tr, sRet, sRet + 1, self.rare(mode, par, nxt), back))
        g[64] += ['v_and_b32 v%d, 0x40004000, v%d' % (vOr, vOr), 'v_cmp_ne_u32 vcc, 0, v%d' % vOr]
        g[67] += ['s_cbranch_vccnz %s' % tr, back + ':']
    def sregs(self, mode, par, qt):
        return [stile(mode, par, kt, qt)[1] + r for kt in range(2 if mode == 'd' else 4) for r in range(4)]
    def rare(self, mode, par, nxt):
        key = 'L_rare_%s%d%s' % (mode, par, nxt or 'n')
        if key in self.rares: return key
        self.rares[key] = b = self.blk(key, tail=True)
        b(key + ':\ns_nop 7\ns_nop 1')
        d, f, t = U[0], U[1], U[4]
        for qt in (range(4) if mode == 'd' else (2, 3)):
            sr = self.sregs(mode, par, qt)
            b('v_max3_f32 v%d, v%d, v%d, v%d' % (d, sr[0], sr[1], sr[2]))
            for i in range(3, len(sr) - 1, 2): b('v_max3_f32 v%d, v%d, v%d, v%d' % (d, d, sr[i], sr[i + 1]))
            b('v_max_f32 v%d, v%d, v%d' % (d, d, sr[-1]))
            for sw in ('v_permlane32_swap_b32', 'v_permlane16_swap_b32'):
                b('v_mov_b32 v%d, v%d\ns_nop 1\n%s v%d, v%d\nv_max_f32 v%d, v%d, v%d' % (t, d, sw, d, t, d, d, t))
            b('v_add_f32 v%d, 0x%x, v%d\nv_max_f32 v%d, 0, v%d\nv_sub_f32 v%d, 0, v%d\nv_exp_f32 v%d, v%d' % (d, TREF, d, d, d, f, d, f, f))
            for r in range(4): b('v_sub_f32 v%d, v%d, v%d' % (negm(qt)[1] + r, negm(qt)[1] + r, d))
            for r in range(4): b('v_mul_f32 v%d, v%d, v%d' % (ltile(qt)[1] + r, ltile(qt)[1] + r, f))
            for dt in range(8):
                o = oacc(dt, qt)[1]
                for r in range(4): b('v_accvgpr_read_b32 v%d, a%d' % (t + r, o + r))
                for r in range(4): b('v_mul_f32 v%d, v%d, v%d' % (t + r, t + r, f))
                for r in range(4): b('v_accvgpr_write_b32 a%d, v%d' % (o + r, t + r))
            for r in sr: b('v_sub_f32 v%d, v%d, v%d' % (r, r, d))
            if nxt and (nxt == 'd' or qt >= 2):
                for r in self.sregs(nxt, par ^ 1, qt): b('v_sub_f32 v%d, v%d, v%d' % (r, r, d))
        for (S, P) in self.pairs(mode, par):
            b('v_exp_f32 v%d, v%d\nv_exp_f32 v%d, v%d\ns_nop 0\nv_cvt_pk_bf16_f32 v%d, v%d, v%d' % (vE[0], S, vE[1], S + 1, P, vE[0], vE[1]))
        b('s_nop 1\ns_setpc_b64 s[%d:%d]' % (sRet, sRet + 1))
        return key
    def mask_scalars(self, offs):
        out = []
        for o in offs:
            out += ['s_cmp_eq_i32 s%d, %d\ns_cselect_b32 s%d, 1.0, 0' % (sD, -o, sTri[o + 3]),
                    's_cmp_lt_i32 s%d, %d\ns_cselect_b32 s%d, 0x%x, 0' % (sD, -o, sNone[o + 3], BIGN)]
        return out

    def at_block(self, name, steps, sm, nxt, bar, dma, hook=None, nl_in=6, wait='WAIT kv:1 lgkm0', post=(), dma_hi=None, ini_from=0):
        b = self.blk(name)
        ms, fr, inits = [], [], []
        for (m, f, ini) in steps:
            fr += [(t, u0 + len(ms), u1 + len(ms)) for (t, u0, u1) in f]
            inits += [(u + len(ms), ops) for (u, ops) in ini]
            ms += m
        st = Stream(ms); G = st.n
        assert len(sm) == G, (name, len(sm), G)
        for g in range(G):
            for t in sm[g]: (st.tail if (t.startswith('s_cbranch') or t.endswith(':')) else st.gaps)[g].append(t)
        pos = self.ring_step(st, bar, wait, nxt, post)
        for i, g in enumerate(pos): assert len(fr) + i < 16 or g >= fr[len(fr) + i - 16][2], (name, i)
        def busy(g): return st.has(g, 'buffer') or st.has(g, 'ds_')
        real = [x for x in dma if any(t.startswith('buffer') for t in x)]
        lim = min(dma_hi or bar - 2, self.o('atsp', 8) * len(real))
        prev = -1; i = 0
        for grp in dma:
            if not any(t.startswith('buffer') for t in grp):
                st.front[prev + 1] += grp; prev += 1; continue
            tgt = 2 + i * (lim - 2) // len(real); i += 1
            x = min([x for x in range(prev + 1, G) if not busy(x)], key=lambda x: abs(x - tgt) + 0.8 * st.cost(x))
            st.front[x] += grp; prev = x
        if hook: hook(st)
        own = fr[nl_in:]
        LAT = self.o('lat', 6); lim = bar - self.o('barlat', 5)
        n_own = len(own)
        best = [[INF] * (G + 2) for _ in range(n_own + 1)]; take = [[False] * (G + 2) for _ in range(n_own + 1)]
        for g in range(G + 2): best[n_own][g] = 0
        cost = [st.cost(g) for g in range(G)]
        for i in range(n_own - 1, -1, -1):
            t, u0, u1 = own[i]; n = i + nl_in
            free = max(fr[n - 16][2] if n >= 16 else 0, 0); dl = min(u0 - LAT, lim)
            for g in range(G - 1, -1, -1):
                best[i][g] = best[i][g + 1]
                if free <= g <= dl and not busy(g):
                    c = max(0, cost[g] - 4) - max(0, cost[g] - 8) + 0.01 * g + best[i + 1][g + 1]
                    if c <= best[i][g]: best[i][g] = c; take[i][g] = True
        assert best[0][0] < INF, name
        g = 0
        for i in range(n_own):
            while not take[i][g]: g += 1
            st.front[g].append(own[i][0]); g += 1
        pre = []
        seq = []
        for (u, ops) in inits:
            if u < 3: pre += ops
            else: seq += [(max(u - 24, ini_from if u < ini_from + 40 else u - 24), u - 3, t) for t in ops]
        st.valu(seq)
        b(name + ':')
        for t in self.stamp(name) + pre: b(t)
        st.emit(b)
        return b

    def finalize(self, qts, blk_expr, tag, lead):
        out = [(0, blk_expr + '\ns_lshl_b32 s95, s%d, 4\ns_add_u32 s94, s94, s95\ns_lshl_b32 s94, s94, 15\ns_add_u32 s94, s94, s%d\n'
                   's_add_u32 s%d, s94, %d\ns_add_u32 s%d, s94, %d' % (sH, sMC, sT0, CTXB, sT1, CTXB + 4096))]
        out += [(lead + 4, 'v_rcp_f32 v%d, v%d' % (ltile(qt)[1], ltile(qt)[1])) for qt in qts]
        for ks in range(4):
            for qi, qt in enumerate(qts):
                L = ltile(qt)[1]; t = U[8 * qi:8 * qi + 8]
                o = oacc(2 * ks, qt)[1]; e = lead + 8 * ks + 12
                out += [(e, 'v_accvgpr_read_b32 v%d, a%d' % (t[r], o + r)) for r in range(8)]
                out += [(e, 'v_mul_f32 v%d, v%d, v%d' % (t[r], t[r], L)) for r in range(8)]
                q = qfrag(qt, ks)[1]
                out += [(e, x) for x in cvt4(q, t[0], t[4])]
                out.append((e, 'buffer_store_dwordx4 %s, v%d, %s, s%d offen offset:%d sc1 @%s' % (v4(q), vL16, srd(R_WS), sT0 + qi, ks * 1024, tag)))
        return out

    def attention(self):
        E = lambda n: [[] for _ in range(n)]
        vnext_d = [self.v_read(n, 0, n) for n in range(6)]
        knext_s = [self.k_read(n, n >> 2, n & 3) for n in range(6)]
        DBAR = self.o('dbar', 112); SBAR = self.o('sbar', 56)
        def dual(name, kind):
            w1, w0 = self.softmax('d', 1), self.softmax('d', 0)
            self.check(w1, 'd', 1, 'd'); self.check(w0, 'd', 0, 'd')
            masked = kind == 'm'
            steps = [self.pv_step('d', 0, 0, 0), self.qk_step('d', 0, 0, 8, masked), self.ones_step('d', 0),
                     self.pv_step('d', 1, 1, 16), self.qk_step('d', 1, 1, 24, masked), self.ones_step('d', 1)]
            dma = self.at_dma(); sm = w1 + w0; bar = DBAR; wait = 'WAIT kv:1 lgkm0'
            if kind == 'f':
                fm, frd = self.ffn_step()
                steps.append((fm, [], [])); sm = w1 + w0[:67] + E(4) + w0[67:]; bar = self.o('fbar', 80)
                wait = 'WAIT kv:1 fd:%d lgkm0' % (self.o('fdeep', 1) - 1)
            if masked: dma = dma + self.wd_dma() + self.wo_dma(1, 'wo0')
            def hook(st):
                G = st.n
                if masked:
                    for base in (2, 70): st.salu(self.mask_scalars((-1, 0, 1)) + ['s_sub_u32 s%d, s%d, 2' % (sD, sD)], base)
                else: st.salu(['s_sub_u32 s%d, s%d, 4' % (sD, sD)], 100)
                st.salu(['s_sub_u32 s%d, s%d, 1' % (sCnt, sCnt)], G - 10)
                if kind == 'f':
                    st.gaps[3].append('v_add_u32 v%d, s%d, v%d' % (vFRc, sFrd, vFR))
                    st.vmem(self.ffn_dma(), bar + 2, 12)
                    free = [g for g in range(bar + 1, G - 9) if not st.has(g, 'buffer') and not st.has(g, 'ds_')]
                    free = sorted(sorted(free, key=lambda g: (st.cost(g), g))[:len(frd)])
                    for g, t in zip(free, frd): st.front[g].append(t)
                    st.gaps[G - 3].append('v_add_u32 v%d, 0x100, v%d' % (vFX, vFX))
                    st.salu(['s_add_u32 s%d, s%d, 16384' % (sFrd, sFrd), 's_cmp_eq_u32 s%d, 49152\ns_cselect_b32 s%d, 0, s%d' % (sFrd, sFrd, sFrd),
                             's_sub_u32 s%d, s%d, 1' % (sCnt2, sCnt2)], 68)
                if not masked: st.vmem([pk2], 71, 1)
                st.gaps[G - 1].append('s_cmp_lg_u32 s%d, 0' % (sCnt2 if kind == 'f' else sCnt))
            blk = self.at_block(name, steps, sm, vnext_d, bar, dma, hook, wait=wait, dma_hi=(130 if masked else None), ini_from=10)
            blk('s_cbranch_scc1 ' + name)
            return blk
        pk2 = ['buffer_load_dword v%d, v%d, %s, 0 offen sc1' % (vT, vPoll, srd(R_WS))]
        def kv2(blk):
            blk.autowait()
            for t in self.poll(8)[1] + self.fence('buffer_inv sc1'): blk(t)
        dpf = dual('L_dpf', 'f')
        dfx = self.blk('dfx'); kv2(dfx)
        dfx('s_cmp_eq_u32 s%d, 0\ns_cbranch_scc1 L_dpx' % sCnt)
        dp = dual('L_dp', 'p')
        dpx = self.blk('dpx'); dpx('L_dpx:'); kv2(dpx)
        dpx('s_mov_b32 s%d, 1' % sCnt)
        dd1 = self.blk('dd1'); dd1('L_dd_one:\ns_add_u32 s%d, s%d, 1' % (sCnt, sCnt))
        dd = dual('L_dd', 'm')
        w1, w0s = self.softmax('d', 1), self.softmax('s', 0)
        self.check(w1, 'd', 1, 's')
        steps = [self.pv_step('d', 0, 0, 0), self.qk_step('s', 0, 0, 8, True), self.ones_step('d', 0), self.ones_step('d', 1), self.pv_step('d', 1, 1, 24)]
        fz = self.finalize((0, 1), 's_mov_b32 s94, s%d' % sJ, 'ca', 72)
        rest = []
        def hook(st):
            st.salu(['s_lshl_b32 s94, s%d, 4\ns_sub_u32 s%d, 112, s94' % (sJ, sD), 's_lshl_b32 s94, s%d, 1\ns_add_u32 s%d, s%d, s94' % (sW, sD, sD)]
                    + self.mask_scalars(range(-3, 2)), 1)
            st.salu(['s_sub_u32 s%d, s%d, 4' % (sD, sD)], 66)
            st.vmem([pk2], 44, 1)
            st.front[39] += ['WAIT wd:0']
            st.gaps[38].append('v_add_u32 v%d, s%d, v%d' % (vFRc, sT2, vRO[0]))
            rd = ['ds_read_b64_tr_b16 %s, v%d offset:%d' % (rr((ffd(u)[0], ffd(u)[1] + 2 * hf), 2), vFRc, hf * 4608 + 32 * u) for u in range(9) for hf in range(2)]
            st.ds(rd, 40, 64)
            st.front[68] += ['WAIT lgkm0']
            st.vmem(self.wo_dma(0, 'wo0'), 69, 4)
            g = 70
            for i, (e, t) in enumerate(fz):
                if t.startswith('buffer'): rest.extend(fz[i:]); break
                g = max(g, e)
                while g < st.n and st.cost(g) + Stream.icost(t) > 8: g += 1
                if g >= st.n: rest.extend(fz[i:]); break
                st.gaps[g].append(t)
        trn = self.at_block('L_tr', steps, w1 + w0s[:32] + E(4), knext_s, 90, self.at_dma(), hook, dma_hi=38, ini_from=14)
        fa = self.blk('finA')
        for t in self.stamp(4) + [x[1] for x in rest]: fa(t)
        for n in range(4, 8):
            for r in range(4): fa('v_mov_b32 v%d, 0' % (pblk(n) + r))
        kv2(fa)
        for t in self.ffn_a() + self.wo7_setup() + self.flag_addr(F_CA, 0xe7, 4, 8): fa(t)
        self.ffn_b(fa)
        fa('s_lshl_b32 s94, s%d, 1\ns_sub_u32 s%d, 13, s94' % (sJ, sCnt))
        for t in self.stamp('fa'): fa(t)
        fa('s_cmp_eq_u32 s%d, 7\ns_cbranch_scc1 L_pub7' % sJ)
        pub7 = self.blk('pub7', tail=True)
        pub7('L_pub7:\ns_waitcnt vmcnt(0)\ns_barrier')
        for t in self.publish(F_CA) + self.publish(F_FF) + self.mask_scalars(range(-3, 2)): pub7(t)
        pub7('s_branch L_s3')
        def single(name, par, masked, dma, nxt, next_masked=False, more=None, **kw):
            wa, wb = self.softmax('s', par), self.softmax('s', par ^ 1)
            self.check(wa, 's', par, 's')
            steps = [self.qk_step('s', par ^ 1, 0, 0, masked), self.ones_step('s', par ^ 1), self.pv_step('s', par, 0, 16)]
            def hook(st):
                st.salu(['s_sub_u32 s%d, s%d, 4' % (sD, sD)] + (self.mask_scalars(range(-3, 2)) if next_masked else []), 37)
                if more: more(st)
            return self.at_block(name, steps, wa[32:] + wb[:32], nxt, SBAR, dma, hook, **kw)
        sp0 = single('L_sp', 0, False, self.at_dma(), knext_s)
        def cnt(st):
            st.salu(['s_sub_u32 s%d, s%d, 1' % (sCnt, sCnt)], 60)
            st.gaps[67].append('s_cmp_lg_u32 s%d, 0' % sCnt)
        sp1 = single('L_sp1', 1, False, self.at_dma(), knext_s, more=cnt)
        sp1('s_cbranch_scc1 L_sp')
        s1b = single('L_s1', 0, False, self.at_dma(), knext_s, True, wait='WAIT kv:1 ca:0 lgkm0', post=self.publish(F_CA) + self.publish(F_FF))
        s2b = single('L_s2', 1, True, self.at_dma(False, True), knext_s, True)
        ld, chk = self.poll(4)
        pl = self.groups(self.pctx_loads(0))
        def partners(st):
            st.front[3] += ld
            st.gaps[27] += chk
            st.vmem([pl.pop(0) for _ in range(8)], 29, 5)
        s3b = single('L_s3', 0, True, [], [self.v_read(n, n & 1, n >> 1) for n in range(6)], more=partners, wait='WAIT kv:0 lgkm0')
        fin = self.blk('atfin')
        for t in self.stamp('fin'): fin(t)
        wl = self.softmax('s', 1)
        self.check(wl, 's', 1, None)
        on = self.ones_step('s', 0)[0]
        for g in range(32, 68):
            if g % 8 == 0 and on: fin(on.pop(0))
            for t in wl[g]: fin(t)
            if g % 16 == 3:
                for t in pl.pop(0): fin(t)
        for t in self.stamp(5): fin(t)
        self.pl_rest = pl
        tail = [s3b, fin]
        return [[dp, dp, dp, dpx, dd1, dd, dd, trn, fa, sp0, sp1, sp0, sp1, s1b, s2b] + tail,
                [dp, dpx, dd1, dd, dd, trn, fa, sp0, sp1, s1b, s2b] + tail,
                [dd1, dd, trn, fa, sp0, sp1, sp0, sp1, s1b, s2b] + tail,
                [dpf, dpf, dpf, dfx, dpx, dd1, dd, dd, trn, fa, sp0, sp1, s1b, s2b] + tail,
                [dpf, dpf, dpf, dfx, dp, dp, dpx, dd1, dd, dd, trn, fa, pub7] + tail]

    def o_scalars(self):
        out = []
        A, B = 's%d' % sA, 's%d' % sB
        for n in range(4):
            out += ['s_add_u32 %s, s%d, %d' % (A, sY, n), 's_and_b32 %s, %s, 3' % (A, A), 's_lshl_b32 %s, s%d, 2' % (B, sX), 's_add_u32 %s, %s, %s' % (A, A, B)]
            if n:
                out += ['s_lshl_b32 %s, %s, 4' % (B, A), 's_add_u32 %s, %s, s%d' % (B, B, sJ), 's_lshl_b32 %s, %s, 15' % (B, B),
                        's_add_u32 %s, %s, s%d' % (B, B, sMC), 's_add_u32 s%d, %s, %d' % (sPc[n - 1], B, CTXB)]
            out += ['s_lshl_b32 %s, %s, 2' % (A, A), 's_add_u32 %s, %s, s%d' % (A, A, sW), 's_mul_i32 %s, %s, %d' % (A, A, 32 * 1152),
                    's_mul_i32 %s, s%d, 288' % (B, sY), 's_add_u32 s%d, %s, %s' % (sWoS[n], A, B)]
        out += ['s_mul_i32 s%d, s%d, 9216' % (sT2, sW),
                's_cmp_eq_u32 s%d, 3\ns_cselect_b32 s%d, %d, s%d' % (sW, sT3, OOB, sWoS[1]),
                's_cmp_eq_u32 s%d, 3\ns_cselect_b32 s%d, %d, s%d' % (sW, sWoM1, 3 * 9216 + 1024, sT2)]
        return out
    def wo7_setup(self):
        out = ['s_sub_u32 s94, 3, s%d' % sW, 's_mul_i32 s94, s94, %d' % (32 * 1152), 's_add_u32 s%d, s%d, s94' % (sWo7, sWoS[1]),
               's_lshl_b32 s94, s%d, 6' % sW, 'v_lshrrev_b32 v%d, 4, v%d' % (U[1], vL16), 'v_add_u32 v%d, s94, v%d' % (U[1], U[1])]
        for i in range(2):
            if i: out.append('v_add_u32 v%d, 0x100, v%d' % (U[1], U[1]))
            out += ['v_mul_u32_u24 v%d, 0xe39, v%d' % (U[2], U[1]), 'v_lshrrev_b32 v%d, 16, v%d' % (U[2], U[2]),
                    'v_mul_u32_u24 v%d, 0x360, v%d' % (U[2], U[2]), 'v_lshl_add_u32 v%d, v%d, 4, v%d' % (vWo7[i], U[1], U[2])]
        return out
    def chunk_dma(self, R, so_, mreg, loc, tag):
        ld = lambda i: 'buffer_load_dwordx4 v%d, %s, s%d offen offset:%d lds @%s' % (vWo[i], srd(R), so_, (i & 3) * 1024, tag)
        return self.dma([('s_add_u32 m0, s%d, %d' % (mreg, loc + q * 4096), [ld(i) for i in range(4 * q, min(4 * q + 4, 9))]) for q in range(3)])
    def wd_dma(self): return self.chunk_dma(R_WD, sFd, sT2, WK0, 'wd')
    def wo_dma(self, n, tag):
        if n == 4:
            ld = 'buffer_load_dwordx4 v%d, %s, s%d offen lds @%s'
            return self.dma([('s_lshr_b32 m0, s%d, 2' % sMW, [ld % (vWo7[0], srd(R_WO), sWo7, tag)]),
                             ('s_add_u32 m0, m0, 4096', [ld % (vWo7[1], srd(R_WO), sWo7, tag)]), ('s_mov_b32 m0, 8192', [ld % (vWo[8], srd(R_WO), sWo7, tag)])])
        return self.chunk_dma(R_WO, [sWoS[0], sT3, sWoS[2], sWoS[3]][n], sWoM1 if n == 1 else sT2, [WK0, WK0 + 4 * 9216, 9216, 5 * 9216][n], tag)
    def pctx_loads(self, blk):
        out = []
        for n in range(1, 4):
            if blk: out += ['s_lshl_b32 s94, s%d, 1' % sJ, 's_sub_u32 s94, 15, s94', 's_lshl_b32 s94, s94, 15', 's_add_u32 s%d, s%d, s94' % (sPc[n - 1], sPc[n - 1])]
            out.append('s_add_u32 s%d, s%d, 4096' % (sPc4, sPc[n - 1]))
            for ks in range(4):
                for qt in range(2):
                    out.append('buffer_load_dwordx4 %s, v%d, %s, s%d offen offset:%d sc1' % (rr(pctx(blk, n, qt, ks)), vL16, srd(R_WS), sPc4 if qt else sPc[n - 1], ks * 1024))
        return out
    def wo_reads(self, f, c, u):
        base, off = (vRO[0], 9216 * c) if c < 7 else ((vRO[1], 9216 * (c - 7)) if c < 14 else (vRO[2], 9216 * (c - 14)))
        r = fifo(f)
        return ['ds_read_b64_tr_b16 %s, v%d offset:%d' % (rr((r[0], r[1] + 2 * hf), 2), base, off + hf * 4608 + 32 * u) for hf in range(2)]
    def part_store(self, acc, u, tag, sp):
        x, y = acc(u, 0)[1], acc(u, 1)[1]
        return cvt4(x, x, y), ['buffer_store_dwordx4 %s, v%d, %s, s%d offen sc1 @%s' % (v4(x), vL16, srd(R_WS), sp, tag), 's_add_u32 s%d, s%d, 8192' % (sp, sp)]
    def part_base(self, blk, dst, wave, extra):
        return ['s_mov_b32 s94, s%d' % sJ if blk == 0 else 's_sub_u32 s94, 15, s%d' % sJ, 's_lshl_b32 s94, s94, 2', 's_add_u32 s94, s94, s%d' % sY,
                's_lshl_b32 s94, s94, 2', 's_add_u32 s94, s94, s%d' % wave, 's_mul_i32 s94, s94, %d' % (72 * 1024), 's_add_u32 s94, s94, %d' % PART,
                's_add_u32 s%d, s94, s%d' % (dst, extra)]

    def o_phase(self):
        b = self.blk('oproj')
        LA = 10; P0 = 36
        pv, vfr, _ = self.pv_step('s', 1, 0, 0)
        KM = self.o('km', 8)
        seq = [(0, c, u) for c in range(16) for u in range(9)] + [(1, c, u) for c in range(KM) for u in range(9)]
        seq += [(1, c, u) for u in range(9) for c in range(KM, 16)]
        ms = self.ones_step('s', 1)[0] + pv
        for f, (blk, c, u) in enumerate(seq):
            for qt in range(2):
                d = lacc(u, qt) if blk == 0 else hacc(u, qt)
                ms.append(mfma(d, fifo(f), pctx(blk, c >> 2, qt, c & 3), '0' if c == 0 else d))
        st = Stream(ms); G = st.n
        for n in range(6, 16): st.front[2 * (n - 6)].append(vfr[n][0])
        for f, (blk, c, u) in enumerate(seq):
            for hf, t in enumerate(self.wo_reads(f, c, u)): st.front[P0 + 2 * f - LA + hf].append(t)
        B1 = P0 - LA - 1; B2 = P0 + 2 * 63 - LA - 1; B2b = P0 + 2 * 108 - LA - 1; B3 = self.o('b3', 520)
        st.front[B1] += ['WAIT wo0:0 lgkm0', 's_barrier']
        st.vmem(self.pl_rest[:4], 1, 5)
        e1 = st.vmem(self.wo_dma(4, 'wo1') + self.wo_dma(2, 'wo1'), B1 + 1, 5)
        e2 = st.vmem(self.pl_rest[4:] + self.wo_dma(3, 'wo2'), e1 + 4, self.o('wsp', 6))
        assert e1 < B2 - 30 and e2 < B2b - 20, (e1, e2)
        g = 0; sg = self.o('cb0', 40)
        for (e, t) in self.finalize((2, 3), 's_sub_u32 s94, 15, s%d' % sJ, 'cb', 4):
            if t.startswith('buffer'): sg = st.vmem([[t]], max(sg, g + 1), 1) + self.o('cbsp', 16)
            else: g = st.valu([(e, INF, t)], g, cap=12 if g % self.o('fcap', 3) == 0 else 8)
        assert sg < B2b, sg
        st.front[B2] += ['WAIT wo1:0', 's_barrier']
        st.front[B2b] += ['WAIT wo2:0 cb:0', 's_barrier']
        st.vmem([self.publish(F_CB)], B2b + 2, 4)
        st.gaps[B2b + 10].append(self.next_flag())
        ld, chk = self.poll(4)
        st.vmem([ld], B2b + 30, 1)
        st.gaps[B2b + 55] += chk
        e = st.vmem(self.groups(self.pctx_loads(1)), B2b + 57, self.o('psp', 6))
        assert e < 450, e
        st.salu(['\n'.join(['s_lshl_b32 s95, s%d, 10' % sX] + self.part_base(0, sPart, sW, 95))], B2b + 20)
        st.salu(['\n'.join(['s_lshl_b32 s95, s%d, 10' % sX] + self.part_base(1, sPart2, sW, 95))], B2b + 24)
        for u in range(9):
            cv, so_ = self.part_store(lacc, u, 'pl', sPart)
            e = st.valu([(P0 + 270 + 2 * u + 5, INF, t) for t in cv])
            st.vmem([so_], max(e + 1, self.o('pl0', 316) + self.o('plsp', 16) * u), 1)
        spill = []
        for u in range(9):
            cv, so_ = self.part_store(hacc, u, 'ph', sPart2)
            n = 2 * (16 - KM)
            g = P0 + 288 + 18 * KM + n * u + n - 1 + 5
            if g + 6 < G:
                e = st.valu([(g, INF, t) for t in cv]); st.vmem([so_], e + 1, 1)
            else: spill += cv + so_
        st.front[B3] += ['WAIT pl:0', 's_barrier']
        st.vmem([self.publish(F_PL)], B3 + 2, 1)
        g = st.vmem(self.final_prefetch(), 455, 3)
        assert g < G - 30, g
        st.valu([(max(g + 1, B3 + 6), INF, t) for t in self.flag_addr(F_PL, 0xf8, 8, 1)])
        ld, chk = self.poll(8)
        st.vmem([ld], G - 14, 1)
        for g in range(G): st.tail[g] += self.stamp('o%d' % g)
        b.autowait()
        st.emit(b)
        for t in spill + self.stamp(7): b(t)
        fl = self.final_loads(0)
        b.autowait()
        for t in chk + fl[0]: b(t)
        b('s_waitcnt vmcnt(8)\ns_barrier')
        for t in self.publish(F_PH) + fl[1] + [self.next_flag()]: b(t)
        self.ffn_fetch(b)
        ld, chk = self.poll(8)
        b('s_waitcnt vmcnt(0)')
        for t in ld: b(t)
        self.final_combine(b, 0)
        for t in self.stamp(8): b(t)
        b('s_waitcnt vmcnt(2)')
        for t in chk + self.stamp(9): b(t)
        fl = self.final_loads(1)
        for t in fl[0] + fl[1]: b(t)
        b('s_waitcnt vmcnt(0)')
        self.final_combine(b, 1)
        return b

    def item_scalars(self, blk, rnd):
        return ['s_and_b32 s95, s%d, 1' % sX, 's_mul_i32 s94, s95, %d' % (5 if blk == 0 else 4),
                's_add_u32 s94, s94, s%d' % sW if rnd == 0 else 's_add_u32 s94, s94, 4']
    def item_exists(self, blk):
        return ['s_and_b32 s95, s%d, 1' % sX, 's_xor_b32 s95, s95, %d' % blk, 's_or_b32 s95, s95, s%d' % sW, 's_cmp_eq_u32 s95, 0']
    def final_prefetch(self):
        out = [['s_movk_i32 s%d, 0x4800' % sT1]]
        for blk in range(2):
            out.append(['v_bfe_u32 v%d, v%d, 4, 4' % (U[0], vL16), 's_mov_b32 s94, s%d' % sJ if blk == 0 else 's_sub_u32 s94, 15, s%d' % sJ,
                        's_lshl_b32 s94, s94, 2', 's_lshr_b32 s95, s%d, 1' % sX, 's_add_u32 s94, s94, s95', 's_lshl_b32 s94, s94, 5',
                        'v_add_u32 v%d, s94, v%d' % (vRw[blk], U[0])])
            out.append(['v_lshlrev_b32 v%d, 2, v%d' % (U[0], vRw[blk]), 'v_add_u32 v%d, %d, v%d' % (U[0], GBUF, U[0]),
                        'buffer_load_dword v%d, v%d, %s, 0 offen sc1' % (vG[2 * blk], U[0], srd(R_WS))])
            out.append(['buffer_load_dword v%d, v%d, %s, 0 offen offset:64 sc1' % (vG[2 * blk + 1], U[0], srd(R_WS))])
            out.append(['v_mul_u32_u24 v%d, 0x480, v%d' % (U[0], vRw[blk]), 'v_lshrrev_b32 v%d, 8, v%d' % (U[1], vL16)])
            out.append(['v_lshl_add_u32 v%d, v%d, 3, v%d' % (U[0], U[1], U[0]), 's_mul_i32 s94, s%d, 288' % sY, 'v_add_u32 v%d, s94, v%d' % (U[0], U[0])])
            for rnd in range(2):
                it = 2 * blk + rnd
                g = self.item_scalars(blk, rnd) + ['s_lshl_b32 s94, s94, 5']
                if rnd: g += self.item_exists(blk) + ['s_cselect_b32 s94, s94, 0x40000000']
                out.append(g + ['v_add_u32 v%d, s94, v%d' % (vOA[it], U[0]),
                                'buffer_load_dwordx2 v[%d:%d], v%d, %s, 0 offen' % (vx(it), vx(it) + 1, vOA[it], srd(R_X))])
                out.append(['buffer_load_dwordx2 v[%d:%d], v%d, %s, s%d offen' % (vx(it) + 2, vx(it) + 3, vOA[it], srd(R_X), sT1)])
        return out
    @staticmethod
    def pq(rnd, p): return lacc(4 * rnd + (p >> 1), p & 1)[1]
    def final_loads(self, blk):
        skip = self.lab('skip')
        out = [['s_lshr_b32 s%d, s%d, 1' % (sT0, sX)], []]
        for rnd in range(2):
            o = out[rnd]
            if rnd: o += self.item_exists(blk) + ['s_cbranch_scc0 ' + skip]
            o += self.item_scalars(blk, rnd) + ['s_lshl_b32 s%d, s94, 13' % sT2] + self.part_base(blk, sT2, sT0, sT2)
            o.append('s_add_u32 s%d, s%d, 4096' % (sT3, sT2))
            for p in range(8):
                o.append('buffer_load_dwordx4 %s, v%d, %s, s%d offen offset:%d sc1' % (v4(self.pq(rnd, p)), vL16, srd(R_WS), sT2 + (p >> 2), (p & 3) * 1024))
        out[1].append(skip + ':')
        return out
    def final_combine(self, b, blk):
        skip = self.lab('skip')
        A, X, C0, T, O = U[:8], U[8:], vE[0], vM, 10
        b('v_mov_b32 v%d, 0x3f80\nv_mov_b32 v%d, 0x3f800000' % (C0, C0 + 1))
        for rnd in range(2):
            it = 2 * blk + rnd
            if rnd:
                for t in self.item_exists(blk): b(t)
                b('s_cbranch_scc0 ' + skip)
            for d in range(4):
                b('v_lshlrev_b32 v%d, 16, v%d\nv_and_b32 v%d, 0xffff0000, v%d' % (A[2 * d], self.pq(rnd, 0) + d, A[2 * d + 1], self.pq(rnd, 0) + d))
            for p in range(1, 8):
                for d in range(4):
                    for h in range(2): b('v_dot2_f32_bf16 v%d, v%d, v%d, v%d' % (A[2 * d + h], self.pq(rnd, p) + d, C0 + h, A[2 * d + h]))
            for d in range(4):
                b('v_lshlrev_b32 v%d, 16, v%d\nv_and_b32 v%d, 0xffff0000, v%d' % (X[2 * d], vx(it) + d, X[2 * d + 1], vx(it) + d))
            self.ffn_add(b, blk, it, X)
            for qt in range(2):
                b('v_sub_f32 v%d, 1.0, v%d' % (T, vG[2 * blk + qt]))
                for e in range(4):
                    r = 4 * qt + e
                    b('v_mul_f32 v%d, v%d, v%d\nv_fmac_f32 v%d, v%d, v%d' % (X[r], T, X[r], X[r], vG[2 * blk + qt], A[r]))
            for t in cvt4(O, X[0], X[4]): b(t)
            b('buffer_store_dwordx2 v[%d:%d], v%d, %s, 0 offen' % (O, O + 1, vOA[it], srd(R_OUT)))
            b('buffer_store_dwordx2 v[%d:%d], v%d, %s, s%d offen' % (O + 2, O + 3, vOA[it], srd(R_OUT), sT1))
        b(skip + ':')
    def tok_in(self, blk): return 'v_readfirstlane_b32 s94, v%d\ns_sub_u32 s94, s%d, s94\ns_cmp_lt_u32 s94, 32' % (vRw[blk], sTok)
    @staticmethod
    def yreg(rnd, rep): return qfrag(2 + rnd, rep)[1]
    def ffn_fetch(self, b):
        for blk in range(2):
            lab = self.lab('ffq'); back = self.lab('back')
            b(self.tok_in(blk) + '\ns_cbranch_scc1 %s\n%s:' % (lab, back))
            t = self.blk(lab, tail=True)
            a0, a1, a2, a3 = 16, 17, 18, vM2
            t(lab + ':')
            t('v_lshlrev_b32 v%d, 2, v%d\nv_add_u32 v%d, %d, v%d\ns_mov_b32 s%d, 0x4000' % (a0, vL16, a0, FLAG + F_FF * 16384 + FFWG * 64, a0, sSpin))
            t('%s_l:\ns_movk_i32 s94, 0x1000\ns_movk_i32 s95, 0x2000' % lab)
            for r, so_ in ((a1, '0'), (a2, 's94'), (a3, 's95')): t('buffer_load_dword v%d, v%d, %s, %s offen sc1' % (r, a0, srd(R_WS), so_))
            t('s_waitcnt vmcnt(0)\nv_and_b32 v%d, v%d, v%d\nv_cmp_ne_u32 vcc, 1, v%d\ns_mov_b64 s[%d:%d], vcc\nv_cmp_ne_u32 vcc, 1, v%d' % (a1, a1, a2, a1, sRet, sRet + 1, a3))
            t('s_and_b32 s94, vcc_lo, 0xffff\ns_or_b32 s94, s94, s%d\ns_or_b32 s94, s94, s%d\ns_cbranch_scc0 %s_ok' % (sRet, sRet + 1, lab))
            t('s_sleep 2\ns_sub_u32 s%d, s%d, 1\ns_cmp_lg_u32 s%d, 0\ns_cbranch_scc1 %s_l\n%s_ok:' % (sSpin, sSpin, sSpin, lab, lab))
            t('s_movk_i32 s94, 0x1000\nv_mul_u32_u24 v%d, 0x480, v%d' % (a1, vRw[blk]))
            for rnd in range(2):
                t('v_sub_u32 v%d, v%d, v%d\nv_lshlrev_b32 v%d, 1, v%d\nv_add_u32 v%d, %d, v%d' % (a0, vOA[2 * blk + rnd], a1, a0, a0, a0, YACC, a0))
                for rep in range(2): t('buffer_load_dwordx4 %s, v%d, %s, %s offen sc1' % (v4(self.yreg(rnd, rep)), a0, srd(R_WS), ('0', 's94')[rep]))
            t('s_branch ' + back)
    def ffn_add(self, b, blk, it, X):
        lab = self.lab('ffa'); back = self.lab('back')
        b(self.tok_in(blk) + '\ns_cbranch_scc1 %s\n%s:' % (lab, back))
        t = self.blk(lab, tail=True)
        a1, a2 = 17, 18
        Y0, Y1 = self.yreg(it & 1, 0), self.yreg(it & 1, 1)
        t(lab + ':')
        for e in range(4): t('v_add_f32 v%d, v%d, v%d' % (Y0 + e, Y0 + e, Y1 + e))
        for qt in range(2):
            t('v_add_u32 v%d, %d, v%d\nv_cmp_eq_u32 vcc, s%d, v%d\nv_mov_b32 v%d, s%d\ns_nop 0\nv_cndmask_b32 v%d, 0, v%d, vcc' % (a1, 16 * qt, vRw[blk], sTok, a1, a2, sRsel, a2, a2))
            for e in range(4): t('v_fmac_f32 v%d, v%d, v%d' % (X[4 * qt + e], a2, Y0 + e))
        t('s_branch ' + back)

    def finish(self):
        b = self.blk('finish')
        if self.stamps:
            b('s_waitcnt vmcnt(0)')
            for t in self.stamp('end'): b(t)
            b('s_lshl_b32 s94, s2, 8\ns_lshl_b32 s95, s%d, 6\ns_add_u32 s94, s94, s95\ns_add_u32 s94, s94, %d\nv_mov_b32 v0, s94' % (sW, TIMB))
            for n, r in enumerate(self.STAMP): b('v_mov_b32 v1, s%d\nbuffer_store_dword v1, v0, %s, 0 offen offset:%d' % (r, srd(R_WS), 4 * n))
        b('L_end:\ns_endpgm')
        return b

    def build(self):
        setup = self.setup(); start = self.start()
        kv0 = self.kv_phase(0); kv1 = self.kv_phase(1)
        q = self.q_phase()
        att = self.attention()
        op = self.o_phase()
        fin = self.finish()
        traces = [[setup, start, kv, q] + a + [op, fin] for kv in (kv0, kv1) for a in att]
        derive_waits(traces)
        allb = self.blocks + self.tail
        finalize_waits(allb)
        for tr in traces: check_m0(tr)
        n = fix_hazards(traces + [[b] for b in self.tail], allb, 'vnop' in self.opt)
        hdr = open('cdna_kernels/%s.s.ref' % NAME).read().split('; Override')[0]
        out = hdr + ('; stamps=%s\n; wsoff=0\n' % ','.join(self.stamps) if self.stamps else '') + '; @launch grid=(256,1,1) block=(256,1,1) lds=%d\n' % LDS_BYTES
        out += '.amdgcn_target "amdgcn-amd-amdhsa--gfx950"\n.text\n.globl %s_kernel\n.p2align 8\n.type %s_kernel,@function\n%s_kernel:\n' % (NAME, NAME, NAME)
        out += render(allb)
        out += '.section .rodata,"a"\n.p2align 6\n.amdhsa_kernel %s_kernel\n' % NAME
        out += '  .amdhsa_next_free_vgpr 512\n  .amdhsa_next_free_sgpr 102\n  .amdhsa_accum_offset 256\n  .amdhsa_group_segment_fixed_size 0\n'
        out += '  .amdhsa_kernarg_size 120\n  .amdhsa_user_sgpr_count 2\n  .amdhsa_user_sgpr_kernarg_segment_ptr 1\n  .amdhsa_system_sgpr_workgroup_id_x 1\n.end_amdhsa_kernel\n'
        return out

if __name__ == '__main__':
    opts = dict(a.split('=') for a in sys.argv[2:])
    st = opts.pop('stamps', None)
    open(sys.argv[1], 'w').write(Gen(st.split(',') if st else None, opts).build())
```

```python
import sys
HDR = """; @launch grid=(256,1,1) block=(256,1,1) lds=131072
.amdgcn_target "amdgcn-amd-amdhsa--gfx950"
.text
.globl mb_kernel
.p2align 8
.type mb_kernel,@function
mb_kernel:
"""
TAIL = """
s_endpgm
.section .rodata,"a"
.p2align 6
.amdhsa_kernel mb_kernel
  .amdhsa_next_free_vgpr 512
  .amdhsa_next_free_sgpr 102
  .amdhsa_accum_offset 256
  .amdhsa_group_segment_fixed_size 0
  .amdhsa_kernarg_size 16
  .amdhsa_user_sgpr_count 2
  .amdhsa_user_sgpr_kernarg_segment_ptr 1
  .amdhsa_system_sgpr_workgroup_id_x 1
.end_amdhsa_kernel
"""
def gen(body_fn, iters=64, srcbytes=1<<24, word3=0x20000, stride=0):
    L = []
    a = L.append
    a("s_cmp_ge_u32 s2, 256"); a("s_cbranch_scc1 L_end")
    a("s_load_dwordx4 s[4:7], s[0:1], 0")
    a("s_waitcnt lgkmcnt(0)")
    a("s_mov_b32 s8, s4"); a("s_mov_b32 s9, s5"); a("s_mov_b32 s10, %d" % srcbytes); a("s_mov_b32 s11, 0x20000")
    a("s_mov_b32 s12, s6"); a("s_mov_b32 s13, s7"); a("s_mov_b32 s14, 65536"); a("s_mov_b32 s15, 0x20000")
    a("s_mov_b32 s16, s4"); a("s_or_b32 s17, s5, %d" % (stride << 16)); a("s_mov_b32 s18, %d" % (srcbytes//max(stride,1))); a("s_mov_b32 s19, 0x%x" % word3)
    a("v_and_b32 v1, 63, v0"); a("v_lshrrev_b32 v2, 6, v0"); a("s_nop 0"); a("v_readfirstlane_b32 s20, v2")
    a("v_lshlrev_b32 v3, 4, v1")
    a("s_lshl_b32 s21, s20, 13")
    a("s_and_b32 s22, s2, 7"); a("s_lshl_b32 s22, s22, 20"); a("s_lshl_b32 s23, s20, 13"); a("s_add_u32 s22, s22, s23")
    for i in range(4, 252, 4):
        a("buffer_load_dwordx4 v[%d:%d], v3, s[8:11], 0 offen offset:%d" % (i, i+3, (i*16) % 4096))
    a("s_waitcnt vmcnt(0)")
    for i in range(256):
        a("v_accvgpr_write_b32 a%d, v%d" % (i, 4 + (i % 200)))
    a("v_add_u32 v252, s21, v3")
    a("s_mov_b32 s24, %d" % iters)
    a("s_barrier")
    a("s_memtime s[30:31]")
    a("s_memrealtime s[34:35]")
    a("s_waitcnt lgkmcnt(0)")
    a(".p2align 6")
    a("L_loop:")
    body_fn(a)
    a("s_sub_u32 s24, s24, 1"); a("s_cmp_lg_u32 s24, 0"); a("s_cbranch_scc1 L_loop")
    a("s_waitcnt vmcnt(0) lgkmcnt(0)")
    a("s_memtime s[32:33]")
    a("s_memrealtime s[36:37]")
    a("s_waitcnt lgkmcnt(0)")
    a("s_sub_u32 s32, s32, s30"); a("s_sub_u32 s36, s36, s34")
    a("v_mov_b32 v4, s32"); a("v_mov_b32 v5, s36")
    a("s_lshl_b32 s25, s2, 5"); a("s_lshl_b32 s26, s20, 3"); a("s_add_u32 s25, s25, s26")
    a("v_mov_b32 v6, s25")
    a("v_cmp_eq_u32 vcc, 0, v1"); a("s_and_saveexec_b64 s[40:41], vcc")
    a("buffer_store_dwordx2 v[4:5], v6, s[12:15], 0 offen")
    a("s_waitcnt vmcnt(0)")
    a("L_end:")
    return HDR + "\n".join(L) + TAIL

def mfma(a, i):
    d = 16 * ((i // 8) % 8)
    a("v_mfma_f32_32x32x16_bf16 a[%d:%d], v[%d:%d], a[%d:%d], a[%d:%d]" % (d, d+15, 64 + 4*(i % 16), 67 + 4*(i % 16), 128 + 4*(i % 16), 131 + 4*(i % 16), d, d+15))

def valu(a, i, n):
    ops = ["v_exp_f32 v%d, v%d" % (8 + (i % 4)*2, 132 + i % 32), "v_exp_f32 v%d, v%d" % (9 + (i % 4)*2, 164 + i % 32),
           "v_add_f32 v16, v16, v%d" % (8 + ((i+3) % 4)*2), "v_add_f32 v17, v17, v%d" % (9 + ((i+3) % 4)*2),
           "v_cvt_pk_bf16_f32 v%d, v%d, v%d" % (20 + i % 16, 8 + ((i+3) % 4)*2, 9 + ((i+3) % 4)*2)]
    return ops

def make(mode):
    def body(a):
        for i in range(64):
            mfma(a, i)
            if 'v' in mode:
                ops = valu(a, i//2, 0)
                if i % 2 == 0:
                    a(ops[0]); a(ops[2]); a(ops[4])
                else:
                    a(ops[1]); a(ops[3])
            if 'r' in mode and i % 2 == 1:
                k = (i // 2) % 16
                a("ds_read_b128 v[%d:%d], v252 offset:%d" % (64 + 4*((i+8) % 16), 67 + 4*((i+8) % 16), ((i//2) % 8) * 1024))
                a("s_waitcnt lgkmcnt(2)")
            if 'R' in mode:
                a("ds_read_b128 v[%d:%d], v252 offset:%d" % (64 + 4*((i+8) % 16), 67 + 4*((i+8) % 16), (i % 8) * 1024))
                a("s_waitcnt lgkmcnt(4)")
            for ch, per in (('d', 8), ('D', 4)):
              if ch in mode and i % per == 3:
                n = i // per
                if n % 4 == 0:
                    a("s_add_u32 s27, s21, %d" % (32768 + (n//4 % 2) * 4096))
                    a("s_mov_b32 m0, s27")
                    a("s_add_u32 s22, s22, 32768"); a("s_and_b32 s22, s22, 0x7fffff")
                if 't' in mode:
                    a("buffer_load_dwordx4 off, s[16:19], s22 offset:%d lds" % ((n % 4) * 1024))
                elif 'g' in mode:
                    a("buffer_load_dwordx4 v[%d:%d], v3, s[8:11], s22 offen offset:%d" % (200 + 4*(n % 8), 203 + 4*(n % 8), (n % 4) * 1024))
                else:
                    a("buffer_load_dwordx4 v3, s[8:11], s22 offen offset:%d lds" % ((n % 4) * 1024))
            if 'b' in mode and i == 63:
                a("s_waitcnt vmcnt(16)") if ('d' in mode or 'D' in mode) else None
                a("s_barrier")
    return body

if __name__ == "__main__":
    for mode in sys.argv[1:]:
        w3, st = (0x20000 | (1 << 23), 16) if 't' in mode else (0x20000, 0)
        open("mb_%s.s" % mode, "w").write(gen(make(mode), word3=w3, stride=st))
```

```python
import sys
from mb1 import gen
def make(mode):
    parts = mode.split('_')
    pats = parts[0].split('-')
    wn = int(parts[1]) if len(parts) > 1 else 6
    dst = parts[2] if len(parts) > 2 else 'v'
    def body(a):
        n = {'a':0,'e':0,'c':0,'r':0,'d':0,'M':0,'m':0,'t':0,'p':0,'o':0,'O':0}
        for i in range(64):
            for ch in pats[i % len(pats)]:
                k = n.get(ch, 0)
                if ch == 'M':
                    d = 16*((k//8) % 8)
                    a("v_mfma_f32_32x32x16_bf16 a[%d:%d], v[%d:%d], a[%d:%d], a[%d:%d]" % (d, d+15, 64+4*(k%16), 67+4*(k%16), 128+4*(k%16), 131+4*(k%16), d, d+15))
                elif ch == 'm':
                    d = 4*((k//4) % 32)
                    a("v_mfma_f32_16x16x32_bf16 a[%d:%d], v[%d:%d], a[%d:%d], a[%d:%d]" % (d, d+3, 64+4*(k%16), 67+4*(k%16), 128+4*(k%16), 131+4*(k%16), d, d+3))
                elif ch == 'a': a("v_add_f32 v%d, v%d, v%d" % (16 + k % 2, 16 + k % 2, 8 + (k+4) % 8))
                elif ch == 'p': a("v_pk_add_f32 v[16:17], v[16:17], v[%d:%d]" % (8 + 2*((k+2) % 4), 9 + 2*((k+2) % 4)))
                elif ch == 'o': a("v_dot2_f32_bf16 v%d, v%d, v40, v%d" % (16 + k % 2, 20 + (k+8) % 16, 16 + k % 2))
                elif ch == 'O': a("v_dot2c_f32_bf16 v%d, v%d, v40" % (16 + k % 2, 20 + (k+8) % 16))
                elif ch == 'e': a("v_exp_f32 v%d, v%d" % (8 + k % 8, 132 + k % 64))
                elif ch == 'c': a("v_cvt_pk_bf16_f32 v%d, v%d, v%d" % (20 + k % 16, 8 + 2*((k+2) % 4), 9 + 2*((k+2) % 4)))
                elif ch == 'r':
                    if dst == 'v': a("ds_read_b128 v[%d:%d], v252 offset:%d" % (200+4*(k%8), 203+4*(k%8), (k % 8)*1024))
                    else: a("ds_read_b128 a[%d:%d], v252 offset:%d" % (200+4*(k%8), 203+4*(k%8), (k % 8)*1024))
                elif ch == 't':
                    a("ds_read_b64_tr_b16 v[%d:%d], v253 offset:%d" % (200+2*(k%16), 201+2*(k%16), (k % 16)*512))
                elif ch == 'w': a("s_waitcnt lgkmcnt(%d)" % wn)
                elif ch == 's': a("s_nop 0")
                elif ch == 'S': a("s_add_u32 s40, s40, 1")
                elif ch == 'd':
                    a("buffer_load_dwordx4 v3, s[8:11], s22 offen offset:%d lds" % ((k % 4)*1024))
                elif ch == 'b': a("s_barrier")
                if ch in n: n[ch] += 1
    return body
if __name__ == "__main__":
    for mode in sys.argv[1:]:
        s = gen(make(mode))
        s = s.replace("s_mov_b32 s24,", "v_lshrrev_b32 v253, 1, v252\ns_add_u32 s27, s21, 32768\ns_mov_b32 m0, s27\ns_mov_b32 s24,")
        open("mb_%s.s" % mode, "w").write(s)
        open("mb_%s+4.s" % mode, "w").write(s.replace("L_loop:", "s_nop 0\nL_loop:"))
```
